```python
import torch

def _softmax(x, axis=-1):
    return torch.softmax(x, dim=axis)
def _gelu(x):
    return torch.nn.functional.gelu(x, approximate="tanh")
def _silu(x):
    return torch.nn.functional.silu(x)
def _sigmoid(x):
    return torch.sigmoid(x)
def _layernorm(x, axis=-1, eps=1e-5):
    m = x.mean(dim=axis, keepdim=True)
    v = x.var(dim=axis, keepdim=True, unbiased=False)
    return (x - m) / torch.sqrt(v + eps)
def _scatter_add(tgt, idx, src, axis=0):
    return tgt.clone().index_add_(axis, idx, src)
def _segment_sum(src, seg, n):
    out = torch.zeros((n,) + src.shape[1:], dtype=src.dtype)
    return out.index_add_(0, seg, src)
def _pad(x, pw):
    flat = tuple(v for pair in reversed(pw) for v in pair)
    return torch.nn.functional.pad(x, flat)

kernel_name = 'sequential_preLN__sliding_block_cached__dense_activation_gelu__decode'

def setup_inputs():

    _w = (lambda a: (lambda t: t.to(torch.bfloat16) if t.is_floating_point() else t)(torch.as_tensor(a)))
    def _A_setup():
        B, Sq, D = 1, 1, 512
        Hq, Hkv, Sk, Dh = 32, 8, 65536, 128
        assert Hq % Hkv == 0, (Hq, Hkv)
        return {
            "x": _w((lambda *s: torch.randn(*s, dtype=torch.bfloat16) * 0.1)(B, Sq, D)),
            "k_cache": _w((lambda *s: torch.randn(*s, dtype=torch.bfloat16) * 1.6)(B, Hkv, Sk, Dh)),
            "v_cache": _w((lambda *s: torch.randn(*s, dtype=torch.bfloat16) * 1.6)(B, Hkv, Sk, Dh)),
            "wq": _w((lambda *s: torch.randn(*s, dtype=torch.bfloat16) * 1.6)(D, Hq * Dh) * (D ** -0.5)),
            "wo": _w((lambda *s: torch.randn(*s, dtype=torch.bfloat16) * 1.6)(Hq * Dh, D) * ((Hq * Dh) ** -0.5)),
        }
    _A_in = _A_setup()

    def _B_setup():
        B, S, D, F = 1, 1, 512, 1792
        return {
            "x": _w((lambda *s: torch.randn(*s, dtype=torch.bfloat16) * 0.1)(B, S, D)),
            "w1": _w((lambda *s: torch.randn(*s, dtype=torch.bfloat16) * 3.2)(D, F) * (D ** -0.5)),
            "b1": _w((lambda *s: torch.randn(*s, dtype=torch.bfloat16) * 3.2)(F) * 0.01),
            "w2": _w((lambda *s: torch.randn(*s, dtype=torch.bfloat16) * 3.2)(F, D) * (F ** -0.5)),
            "b2": _w((lambda *s: torch.randn(*s, dtype=torch.bfloat16) * 3.2)(D) * 0.01),
        }
    _B_in = _B_setup()

    return {
        "A_x": _A_in["x"],
        "A_k_cache": _A_in["k_cache"],
        "A_v_cache": _A_in["v_cache"],
        "A_wq": _A_in["wq"],
        "A_wo": _A_in["wo"],
        "B_x": _B_in["x"],
        "B_w1": _B_in["w1"],
        "B_b1": _B_in["b1"],
        "B_w2": _B_in["w2"],
        "B_b2": _B_in["b2"],
    }

def reference(A_x, A_k_cache, A_v_cache, A_wq, A_wo, B_x, B_w1, B_b1, B_w2, B_b2):
    def _A_ref(x, k_cache, v_cache, wq, wo):
        B, Sq, D = x.shape
        Hq, Dh = 32, 128
        Hkv, Sk = k_cache.shape[1], k_cache.shape[2]
        W = min(4096, max(256, Sk // 4))
        rep = Hq // Hkv
        q = (lambda x, *d: x.permute(*d))((x @ wq).reshape(B, Sq, Hq, Dh), 0, 2, 1, 3)
        k = (lambda x, n, axis: torch.repeat_interleave(x, n, dim=axis))(k_cache[:, :, Sk - W:, :], rep, axis=1)
        v = (lambda x, n, axis: torch.repeat_interleave(x, n, dim=axis))(v_cache[:, :, Sk - W:, :], rep, axis=1)
        scores = torch.einsum("bhqd,bhkd->bhqk", q, k) * (Dh ** -0.5)
        p = _softmax(scores, axis=-1)
        o = torch.einsum("bhqk,bhkd->bhqd", p, v)
        return (lambda x, *d: x.permute(*d))(o, 0, 2, 1, 3).reshape(B, Sq, Hq * Dh) @ wo

    def _B_ref(x, w1, b1, w2, b2):
        h = torch.einsum("bsd,df->bsf", x, w1) + b1
        h = _gelu(h)
        return torch.einsum("bsf,fd->bsd", h, w2) + b2

    x = A_x
    h = x + _A_ref(_layernorm(x, axis=-1), A_k_cache, A_v_cache, A_wq, A_wo)
    h2 = h + _B_ref(_layernorm(h, axis=-1), B_w1, B_b1, B_w2, B_b2)
    return h2
```

```python
import sys
OUT = sys.argv[1] if len(sys.argv) > 1 else "sequential_preLN__sliding_block_cached__dense_activation_gelu__decode.s"

KA_X, KA_K, KA_V, KA_WQ, KA_WO, KA_BX, KA_W1, KA_B1, KA_W2, KA_B2, KA_OUT, KA_DBG, KA_WS = [8*i for i in range(13)]
WS_Q = 0
WS_OP = 0x10000
WS_ML = 0x90000
WS_AP = 0xA0000
WS_MP = 0xC0000
WS_H = 0x140000
WS_BYTES = 0x150000

L = []
def e(s=""):
    L.append(s)

def srd(dst, base_pair, nbytes, off=0):
    if off:
        e(f"    s_add_u32 s{dst}, s{base_pair}, {off}")
        e(f"    s_addc_u32 s{dst+1}, s{base_pair+1}, 0")
    else:
        e(f"    s_mov_b32 s{dst}, s{base_pair}")
        e(f"    s_mov_b32 s{dst+1}, s{base_pair+1}")
    e(f"    s_mov_b32 s{dst+2}, {nbytes}")
    e(f"    s_mov_b32 s{dst+3}, 0x00020000")

def wave_sum(v, tmp_s):
    for sh in (1, 2, 4, 8):
        e(f"    s_nop 1")
        e(f"    v_add_f32_dpp v{v}, v{v}, v{v} row_shr:{sh} row_mask:0xf bank_mask:0xf bound_ctrl:0")
    e(f"    s_nop 1")
    e(f"    v_add_f32_dpp v{v}, v{v}, v{v} row_bcast:15 row_mask:0xa bank_mask:0xf")
    e(f"    s_nop 1")
    e(f"    v_add_f32_dpp v{v}, v{v}, v{v} row_bcast:31 row_mask:0xc bank_mask:0xf")
    e(f"    s_nop 1")
    e(f"    v_readlane_b32 s{tmp_s}, v{v}, 63")

def bf16r(dst, src):
    e(f"    v_cvt_pk_bf16_f32 v{dst}, v{src}, v{src}")
    e(f"    v_lshlrev_b32 v{dst}, 16, v{dst}")

def unpack(dlo, dhi, src):
    e(f"    v_lshlrev_b32 v{dlo}, 16, v{src}")
    e(f"    v_and_b32 v{dhi}, 0xffff0000, v{src}")

def layernorm8(xr, t0, s0):
    e(f"    v_add_f32 v{t0}, v{xr}, v{xr+1}")
    for i in range(2, 8):
        e(f"    v_add_f32 v{t0}, v{t0}, v{xr+i}")
    wave_sum(t0, s0)
    e(f"    s_nop 1")
    e(f"    v_mov_b32 v{t0}, s{s0}")
    e(f"    v_mul_f32 v{t0}, 0x3b000000, v{t0}")
    e(f"    v_sub_f32 v{t0+1}, v{xr}, v{t0}")
    e(f"    v_mul_f32 v{t0+2}, v{t0+1}, v{t0+1}")
    for i in range(1, 8):
        e(f"    v_sub_f32 v{t0+1}, v{xr+i}, v{t0}")
        e(f"    v_fmac_f32 v{t0+2}, v{t0+1}, v{t0+1}")
    wave_sum(t0+2, s0+1)
    e(f"    s_nop 1")
    e(f"    v_mov_b32 v{t0+2}, s{s0+1}")
    e(f"    v_mul_f32 v{t0+2}, 0x3b000000, v{t0+2}  ; var f32")
    bf16r(t0+2, t0+2)
    e(f"    v_add_f32 v{t0+2}, 0x3727c5ac, v{t0+2}  ; + 1e-5")
    bf16r(t0+2, t0+2)
    e(f"    v_sqrt_f32 v{t0+2}, v{t0+2}")
    e(f"    s_nop 0")
    bf16r(t0+2, t0+2)
    e(f"    v_rcp_f32 v{t0+2}, v{t0+2}")
    bf16r(t0, t0)
    for i in range(8):
        e(f"    v_sub_f32 v{xr+i}, v{xr+i}, v{t0}")
        bf16r(xr+i, xr+i)
        e(f"    v_mul_f32 v{xr+i}, v{xr+i}, v{t0+2}")
        bf16r(xr+i, xr+i)

def kstart(name):
    e(f".globl {name}")
    e(f".p2align 8")
    e(f".type {name},@function")
    e(f"{name}:")

kernels = []

def k1():
    name = "k1_qproj_kernel"
    kernels.append((name, 256, 256, 4*2048+1024, 64))
    kstart(name)
    e("    s_cmp_ge_u32 s2, 256")
    e("    s_cbranch_scc1 K1_END")
    e(f"    s_load_dwordx2 s[4:5], s[0:1], {KA_X}")
    e(f"    s_load_dwordx2 s[6:7], s[0:1], {KA_WQ}")
    e(f"    s_load_dwordx2 s[8:9], s[0:1], {KA_WS}")
    e("    v_and_b32 v1, 63, v0           ; lane")
    e("    v_lshrrev_b32 v2, 6, v0        ; wave")
    e("    s_waitcnt lgkmcnt(0)")
    srd(12, 4, 1024)
    srd(16, 6, 512*4096*2)
    srd(20, 8, 8192, WS_Q)
    e("    s_and_b32 s24, s2, 7")
    e("    s_lshr_b32 s25, s2, 5")
    e("    s_lshl_b32 s25, s25, 3")
    e("    s_add_u32 s24, s24, s25")
    e("    s_lshl_b32 s24, s24, 6")
    e("    s_lshr_b32 s25, s2, 3")
    e("    s_and_b32 s25, s25, 3")
    e("    s_lshl_b32 s25, s25, 4")
    e("    s_add_u32 s24, s24, s25         ; col0")
    e("    s_lshl_b32 s25, s24, 1")
    e("    v_lshlrev_b32 v3, 4, v1")
    e("    buffer_load_dwordx4 v[4:7], v3, s[12:15], 0 offen")
    e("    v_lshrrev_b32 v8, 2, v1")
    e("    v_lshl_add_u32 v8, v2, 7, v8")
    e("    v_lshlrev_b32 v9, 13, v8")
    e("    v_and_b32 v10, 3, v1")
    e("    v_lshl_add_u32 v9, v10, 3, v9")
    e("    v_add_u32 v9, s25, v9")
    for i in range(8):
        e(f"    buffer_load_dwordx2 v[{32+2*i}:{33+2*i}], v9, s[16:19], 0 offen")
        if i < 7:
            e(f"    v_add_u32 v9, 0x20000, v9")
    e("    s_waitcnt vmcnt(8)")
    for i in range(4):
        unpack(16+2*i, 17+2*i, 4+i)
    layernorm8(16, 24, 26)
    e("    v_lshlrev_b32 v11, 11, v2")
    e("    v_lshl_add_u32 v12, v1, 5, v11")
    e("    ds_write_b128 v12, v[16:19]")
    e("    ds_write_b128 v12, v[20:23] offset:16")
    e("    v_lshl_add_u32 v12, v8, 2, v11")
    e("    s_waitcnt lgkmcnt(0)")
    for i in range(8):
        e(f"    ds_read_b32 v{16+i}, v12 offset:{64*i}")
    for j in range(4):
        e(f"    v_mov_b32 v{24+j}, 0")
    e("    s_waitcnt lgkmcnt(0)")
    for i in range(8):
        e(f"    s_waitcnt vmcnt({7-i})")
        unpack(28, 29, 32+2*i)
        unpack(30, 31, 33+2*i)
        for j in range(4):
            e(f"    v_fmac_f32 v{24+j}, v{16+i}, v{28+j}")
    for sh in (4, 8):
        e("    s_nop 1")
        for j in range(4):
            e(f"    v_add_f32_dpp v{24+j}, v{24+j}, v{24+j} row_shr:{sh} row_mask:0xf bank_mask:0xf bound_ctrl:0")
    e("    v_lshrrev_b32 v12, 4, v0        ; w*4+row")
    e("    v_lshlrev_b32 v12, 6, v12")
    e("    v_lshl_add_u32 v12, v10, 4, v12")
    e("    v_and_b32 v13, 15, v1")
    e("    v_cmp_le_u32 vcc, 12, v13")
    e("    s_and_saveexec_b64 s[28:29], vcc")
    e("    ds_write_b128 v12, v[24:27] offset:8192")
    e("    s_mov_b64 exec, s[28:29]")
    e("    s_waitcnt lgkmcnt(0)")
    e("    s_barrier")
    e("    v_cmp_gt_u32 vcc, 16, v0")
    e("    s_and_saveexec_b64 s[28:29], vcc")
    e("    s_cbranch_execz K1_END")
    e("    v_lshlrev_b32 v12, 2, v0")
    for i in range(16):
        e(f"    ds_read_b32 v{32+i}, v12 offset:{8192+64*i}")
    e("    s_waitcnt lgkmcnt(0)")
    for i in range(1, 16):
        e(f"    v_add_f32 v32, v32, v{32+i}")
    e("    v_cvt_pk_bf16_f32 v32, v32, v32")
    e("    v_lshlrev_b32 v12, 1, v0")
    e("    v_add_u32 v12, s25, v12")
    e("    buffer_store_short v32, v12, s[20:23], 0 offen")
    e("K1_END:")
    e("    s_endpgm")

def k2():
    name = "k2_attn_kernel"
    kernels.append((name, 256, 256, 32768+256, 160))
    kstart(name)
    e("    s_cmp_ge_u32 s2, 256")
    e("    s_cbranch_scc1 K2_END")
    e(f"    s_load_dwordx2 s[4:5], s[0:1], {KA_K}")
    e(f"    s_load_dwordx2 s[6:7], s[0:1], {KA_V}")
    e(f"    s_load_dwordx2 s[8:9], s[0:1], {KA_WS}")
    e("    v_and_b32 v1, 63, v0           ; lane")
    e("    v_lshrrev_b32 v2, 6, v0        ; wave")
    e("    s_lshr_b32 s24, s2, 5")
    e("    s_and_b32 s25, s2, 31          ; chunk")
    e("    s_movk_i32 s31, 4096")
    e("    s_lshl_b32 s26, s24, 24")
    e("    s_lshl_b32 s27, s25, 15")
    e("    s_add_u32 s26, s26, s27")
    e(f"    s_add_u32 s26, s26, {61440*256}")
    e("    s_waitcnt lgkmcnt(0)")
    e("    s_add_u32 s12, s4, s26")
    e("    s_addc_u32 s13, s5, 0")
    e("    s_mov_b32 s14, 32768")
    e("    s_mov_b32 s15, 0x00020000")
    e("    s_add_u32 s16, s6, s26")
    e("    s_addc_u32 s17, s7, 0")
    e("    s_mov_b32 s18, 32768")
    e("    s_mov_b32 s19, 0x00020000")
    srd(20, 8, WS_BYTES)
    e("    v_and_b32 v3, 3, v1")
    e("    v_lshrrev_b32 v4, 4, v1        ; l>>4")
    e("    s_lshl_b32 s27, s24, 10")
    e("    v_lshlrev_b32 v5, 8, v3")
    e("    v_lshl_add_u32 v5, v4, 4, v5")
    e("    v_add_u32 v5, s27, v5")
    for j in range(4):
        e(f"    buffer_load_dwordx4 v[{16+4*j}:{19+4*j}], v5, s[20:23], 0 offen offset:{WS_Q+64*j}")
    e("    v_and_b32 v6, 15, v1")
    e("    v_lshl_add_u32 v7, v2, 5, v6")
    e("    v_lshlrev_b32 v7, 8, v7")
    e("    v_lshl_add_u32 v7, v4, 4, v7")
    for t in range(2):
        for j in range(4):
            r = 32 + (t*4+j)*4
            e(f"    buffer_load_dwordx4 v[{r}:{r+3}], v7, s[12:15], {'s31' if t else '0'} offen offset:{64*j}")
    e("    v_lshlrev_b32 v8, 5, v2")
    e("    v_lshl_add_u32 v8, v4, 2, v8")
    e("    v_lshlrev_b32 v8, 8, v8")
    e("    v_lshl_add_u32 v8, v6, 4, v8")
    for i in range(8):
        r = 64 + 4*i
        e(f"    buffer_load_dwordx4 v[{r}:{r+3}], v8, s[16:19], {'s31' if (i>>2) else '0'} offen offset:{(i&3)*256}")
    e("    s_waitcnt vmcnt(8)")
    for t in range(2):
        for j in range(4):
            r = 32 + (t*4+j)*4
            c = "0" if j == 0 else f"v[{96+4*t}:{99+4*t}]"
            e(f"    v_mfma_f32_16x16x32_bf16 v[{96+4*t}:{99+4*t}], v[{r}:{r+3}], v[{16+4*j}:{19+4*j}], {c}")
    e("    s_nop 7")
    e("    s_nop 1")
    e("    v_mov_b32 v9, 0x3db504f3        ; 128^-0.5")
    for i in range(8):
        bf16r(96+i, 96+i)
        e(f"    v_mul_f32 v{96+i}, v{96+i}, v9")
        bf16r(96+i, 96+i)
    e("    v_max_f32 v10, v96, v97")
    for i in range(2, 8):
        e(f"    v_max_f32 v10, v10, v{96+i}")
    e("    v_mov_b32 v11, v10")
    e("    s_nop 1")
    e("    v_permlane16_swap_b32 v10, v11")
    e("    s_nop 1")
    e("    v_max_f32 v10, v10, v11")
    e("    v_mov_b32 v11, v10")
    e("    s_nop 1")
    e("    v_permlane32_swap_b32 v10, v11")
    e("    s_nop 1")
    e("    v_max_f32 v10, v10, v11")
    e("    v_lshlrev_b32 v12, 4, v2")
    e("    v_lshl_add_u32 v12, v3, 2, v12")
    e("    ds_write_b32 v12, v10 offset:32768")
    e("    s_waitcnt lgkmcnt(0)")
    e("    s_barrier")
    e("    v_lshlrev_b32 v12, 2, v3")
    for w in range(4):
        e(f"    ds_read_b32 v{104+w}, v12 offset:{32768+16*w}")
    e("    s_waitcnt lgkmcnt(0)")
    e("    v_max_f32 v10, v104, v105")
    e("    v_max_f32 v11, v106, v107")
    e("    v_max_f32 v10, v10, v11")
    e("    v_mov_b32 v9, 0x3fb8aa3b")
    e("    v_mov_b32 v13, 0")
    for i in range(8):
        e(f"    v_sub_f32 v{96+i}, v{96+i}, v10")
        e(f"    v_mul_f32 v{96+i}, v{96+i}, v9")
        e(f"    v_exp_f32 v{96+i}, v{96+i}")
    e("    s_nop 0")
    for i in range(8):
        e(f"    v_add_f32 v13, v13, v{96+i}")
    e("    v_mov_b32 v11, v13")
    e("    s_nop 1")
    e("    v_permlane16_swap_b32 v13, v11")
    e("    s_nop 1")
    e("    v_add_f32 v13, v13, v11")
    e("    v_mov_b32 v11, v13")
    e("    s_nop 1")
    e("    v_permlane32_swap_b32 v13, v11")
    e("    s_nop 1")
    e("    v_add_f32 v13, v13, v11")
    e("    v_lshlrev_b32 v12, 4, v2")
    e("    v_lshl_add_u32 v12, v3, 2, v12")
    e("    ds_write_b32 v12, v13 offset:32832")
    for k in range(32):
        e(f"    v_mov_b32 v{112+k}, 0")
    for i in range(8):
        e(f"    s_waitcnt vmcnt({7-i})")
        r = 64 + 4*i
        for k in range(4):
            unpack(144+2*k, 145+2*k, r+k)
        for h in range(4):
            e(f"    v_mov_b32_dpp v{152+h}, v{96+i} quad_perm:[{h},{h},{h},{h}] row_mask:0xf bank_mask:0xf")
        for h in range(4):
            for k in range(8):
                e(f"    v_fmac_f32 v{112+8*h+k}, v{152+h}, v{144+k}")
    e("    v_lshrrev_b32 v12, 4, v0")
    e("    v_lshlrev_b32 v12, 11, v12")
    e("    v_lshl_add_u32 v12, v6, 5, v12")
    for h in range(4):
        e(f"    ds_write_b128 v12, v[{112+8*h}:{115+8*h}] offset:{512*h}")
        e(f"    ds_write_b128 v12, v[{116+8*h}:{119+8*h}] offset:{512*h+16}")
    e("    s_waitcnt lgkmcnt(0)")
    e("    s_barrier")
    e("    v_lshlrev_b32 v12, 3, v0")
    for p in range(16):
        e(f"    ds_read_b64 v[{16+2*p}:{17+2*p}], v12 offset:{2048*p}")
    e("    s_waitcnt lgkmcnt(0)")
    for p in range(1, 16):
        e(f"    v_add_f32 v16, v16, v{16+2*p}")
        e(f"    v_add_f32 v17, v17, v{17+2*p}")
    e("    s_lshl_b32 s27, s2, 11")
    e(f"    s_add_u32 s27, s27, {WS_OP}")
    e("    v_add_u32 v12, s27, v12")
    e("    buffer_store_dwordx2 v[16:17], v12, s[20:23], 0 offen")
    e("    v_cmp_gt_u32 vcc, 4, v0")
    e("    s_and_saveexec_b64 s[28:29], vcc")
    e("    s_cbranch_execz K2_END")
    e("    v_lshlrev_b32 v12, 2, v0")
    for w in range(4):
        e(f"    ds_read_b32 v{104+w}, v12 offset:{32832+16*w}")
    e("    s_waitcnt lgkmcnt(0)")
    e("    v_add_f32 v11, v104, v105")
    e("    v_add_f32 v13, v106, v107")
    e("    v_add_f32 v11, v11, v13")
    e("    s_lshl_b32 s27, s2, 5")
    e(f"    s_add_u32 s27, s27, {WS_ML}")
    e("    v_lshlrev_b32 v12, 3, v0")
    e("    v_add_u32 v12, s27, v12")
    e("    buffer_store_dwordx2 v[10:11], v12, s[20:23], 0 offen")
    e("K2_END:")
    e("    s_endpgm")

def k3():
    name = "k3_wo_kernel"
    kernels.append((name, 256, 256, 8192, 96))
    kstart(name)
    e("    s_cmp_ge_u32 s2, 256")
    e("    s_cbranch_scc1 K3_END")
    e(f"    s_load_dwordx2 s[4:5], s[0:1], {KA_WO}")
    e(f"    s_load_dwordx2 s[8:9], s[0:1], {KA_WS}")
    e("    v_and_b32 v1, 63, v0")
    e("    v_lshrrev_b32 v2, 6, v0")
    e("    s_lshr_b32 s24, s2, 3          ; head")
    e("    s_and_b32 s25, s2, 7")
    e("    s_waitcnt lgkmcnt(0)")
    srd(12, 4, 4096*512*2)
    srd(20, 8, WS_BYTES)
    e("    s_lshl_b32 s26, s24, 17")
    e("    s_lshl_b32 s27, s25, 7")
    e("    s_add_u32 s26, s26, s27")
    e("    v_lshrrev_b32 v3, 3, v0")
    e("    v_and_b32 v4, 7, v0")
    e("    v_lshlrev_b32 v5, 10, v3")
    e("    v_lshl_add_u32 v5, v4, 4, v5")
    e("    v_add_u32 v5, s26, v5")
    for i in range(4):
        e(f"    buffer_load_dwordx4 v[{64+4*i}:{67+4*i}], v5, s[12:15], 0 offen offset:0")
        if i < 3:
            e("    v_add_u32 v5, 0x8000, v5")
    e("    s_lshr_b32 s26, s24, 2         ; g")
    e("    s_and_b32 s27, s24, 3          ; h&3")
    e("    s_lshl_b32 s28, s26, 10")
    e("    s_lshl_b32 s29, s27, 3")
    e("    s_add_u32 s28, s28, s29")
    e(f"    s_add_u32 s28, s28, {WS_ML}")
    e("    v_and_b32 v6, 31, v1")
    e("    v_lshlrev_b32 v7, 5, v6")
    e("    v_add_u32 v7, s28, v7")
    e("    buffer_load_dwordx2 v[8:9], v7, s[20:23], 0 offen")
    e("    s_lshl_b32 s28, s26, 16")
    e("    s_lshl_b32 s29, s27, 9")
    e("    s_add_u32 s28, s28, s29")
    e(f"    s_add_u32 s28, s28, {WS_OP}")
    e("    v_and_b32 v10, 127, v0")
    e("    v_lshrrev_b32 v11, 7, v0")
    e("    v_lshlrev_b32 v12, 15, v11")
    e("    v_lshl_add_u32 v12, v10, 2, v12")
    e("    v_add_u32 v12, s28, v12")
    for j in range(16):
        e(f"    buffer_load_dword v{32+j}, v12, s[20:23], 0 offen offset:{(j&1)*2048}")
        if j & 1:
            e("    v_add_u32 v12, 0x1000, v12")
    e("    s_waitcnt vmcnt(16)")
    e("    v_mov_b32 v13, v8")
    for sh in (1, 2, 4, 8):
        e("    s_nop 1")
        e(f"    v_max_f32_dpp v13, v13, v13 row_shr:{sh} row_mask:0xf bank_mask:0xf")
    e("    s_nop 1")
    e("    v_readlane_b32 s30, v13, 15")
    e("    v_readlane_b32 s31, v13, 31")
    e("    s_nop 1")
    e("    v_mov_b32 v13, s30")
    e("    v_max_f32 v13, s31, v13         ; M")
    e("    v_sub_f32 v14, v8, v13")
    e("    v_mul_f32 v14, 0x3fb8aa3b, v14")
    e("    v_exp_f32 v14, v14              ; w_c")
    e("    s_nop 0")
    e("    v_mul_f32 v15, v14, v9          ; w_c*l_c")
    for sh in (1, 2, 4, 8):
        e("    s_nop 1")
        e(f"    v_add_f32_dpp v15, v15, v15 row_shr:{sh} row_mask:0xf bank_mask:0xf bound_ctrl:0")
    e("    s_nop 1")
    e("    v_readlane_b32 s30, v15, 15")
    e("    v_readlane_b32 s31, v15, 31")
    e("    s_nop 1")
    e("    v_mov_b32 v15, s30")
    e("    v_add_f32 v15, s31, v15         ; L")
    e("    v_rcp_f32 v15, v15")
    e("    s_nop 0")
    e("    v_mul_f32 v14, v14, v15         ; scale_c")
    e("    v_lshlrev_b32 v16, 7, v2")
    e("    v_lshl_add_u32 v17, v6, 2, v16")
    e("    ds_write_b32 v17, v14")
    e("    v_lshl_add_u32 v17, v11, 6, v16  ; w*128 + chalf*64")
    e("    s_waitcnt lgkmcnt(0)")
    for k in range(4):
        e(f"    ds_read_b128 v[{48+4*k}:{51+4*k}], v17 offset:{16*k}")
    e("    s_waitcnt lgkmcnt(0) vmcnt(0)")
    e("    v_mul_f32 v18, v32, v48")
    for j in range(1, 16):
        e(f"    v_fmac_f32 v18, v{32+j}, v{48+j}")
    e("    v_lshlrev_b32 v17, 2, v0")
    e("    ds_write_b32 v17, v18 offset:1024")
    e("    s_waitcnt lgkmcnt(0)")
    e("    s_barrier")
    e("    v_lshlrev_b32 v17, 2, v3")
    for i in range(4):
        e(f"    ds_read_b32 v{20+i}, v17 offset:{1024+128*i}")
        e(f"    ds_read_b32 v{24+i}, v17 offset:{1024+512+128*i}")
    e("    s_waitcnt lgkmcnt(0)")
    for i in range(4):
        e(f"    v_add_f32 v{20+i}, v{20+i}, v{24+i}")
        bf16r(20+i, 20+i)
    for k in range(8):
        e(f"    v_mov_b32 v{40+k}, 0")
    for i in range(4):
        for k in range(4):
            unpack(28, 29, 64+4*i+k)
            e(f"    v_fmac_f32 v{40+2*k}, v{20+i}, v28")
            e(f"    v_fmac_f32 v{41+2*k}, v{20+i}, v29")
    e("    s_nop 1")
    for k in range(8):
        e(f"    v_add_f32_dpp v{40+k}, v{40+k}, v{40+k} row_shr:8 row_mask:0xf bank_mask:0xf bound_ctrl:0")
    e("    v_lshrrev_b32 v17, 4, v0")
    e("    v_lshlrev_b32 v17, 8, v17")
    e("    v_lshl_add_u32 v17, v4, 5, v17")
    e("    v_and_b32 v19, 8, v0")
    e("    v_cmp_ne_u32 vcc, 0, v19")
    e("    s_and_saveexec_b64 s[30:31], vcc")
    e("    ds_write_b128 v17, v[40:43] offset:2048")
    e("    ds_write_b128 v17, v[44:47] offset:2064")
    e("    s_mov_b64 exec, s[30:31]")
    e("    s_waitcnt lgkmcnt(0)")
    e("    s_barrier")
    e("    v_cmp_gt_u32 vcc, 64, v0")
    e("    s_and_saveexec_b64 s[30:31], vcc")
    e("    s_cbranch_execz K3_END")
    e("    v_lshlrev_b32 v17, 2, v0")
    for p in range(16):
        e(f"    ds_read_b32 v{32+p}, v17 offset:{2048+256*p}")
    e("    s_waitcnt lgkmcnt(0)")
    for p in range(1, 16):
        e(f"    v_add_f32 v32, v32, v{32+p}")
    e("    s_lshl_b32 s26, s24, 11")
    e("    s_lshl_b32 s27, s25, 8")
    e("    s_add_u32 s26, s26, s27")
    e(f"    s_add_u32 s26, s26, {WS_AP}")
    e("    v_add_u32 v17, s26, v17")
    e("    buffer_store_dword v32, v17, s[20:23], 0 offen")
    e("K3_END:")
    e("    s_endpgm")

def k4():
    name = "k4_mlp_kernel"
    kernels.append((name, 224, 256, 16384, 128))
    kstart(name)
    e("    s_cmp_ge_u32 s2, 224")
    e("    s_cbranch_scc1 K4_END")
    e(f"    s_load_dwordx2 s[4:5], s[0:1], {KA_W1}")
    e(f"    s_load_dwordx2 s[6:7], s[0:1], {KA_W2}")
    e(f"    s_load_dwordx2 s[8:9], s[0:1], {KA_WS}")
    e(f"    s_load_dwordx2 s[10:11], s[0:1], {KA_X}")
    e(f"    s_load_dwordx2 s[32:33], s[0:1], {KA_B1}")
    e("    v_and_b32 v1, 63, v0")
    e("    v_lshrrev_b32 v2, 6, v0")
    e("    s_and_b32 s24, s2, 7")
    e("    s_mul_i32 s24, s24, 7")
    e("    s_lshr_b32 s25, s2, 5")
    e("    s_add_u32 s24, s24, s25")
    e("    s_lshl_b32 s24, s24, 5")
    e("    s_lshr_b32 s25, s2, 3")
    e("    s_and_b32 s25, s25, 3")
    e("    s_lshl_b32 s25, s25, 3")
    e("    s_add_u32 s24, s24, s25        ; f0")
    e("    s_waitcnt lgkmcnt(0)")
    srd(12, 4, 512*1792*2)
    srd(16, 6, 1792*512*2)
    srd(20, 8, WS_BYTES)
    srd(28, 10, 1024)
    srd(36, 32, 1792*2)
    e("    s_lshl_b32 s25, s24, 1")
    e("    s_movk_i32 s26, 3584")
    e("    v_mul_lo_u32 v3, v0, s26")
    e("    v_add_u32 v3, s25, v3")
    e("    buffer_load_dwordx4 v[64:67], v3, s[12:15], 0 offen")
    e(f"    v_add_u32 v3, {256*3584}, v3")
    e("    buffer_load_dwordx4 v[68:71], v3, s[12:15], 0 offen")
    e("    s_lshl_b32 s26, s24, 10")
    e("    v_lshlrev_b32 v3, 10, v2")
    e("    v_lshl_add_u32 v3, v1, 4, v3")
    e("    v_add_u32 v3, s26, v3")
    e("    buffer_load_dwordx4 v[72:75], v3, s[16:19], 0 offen")
    e("    v_add_u32 v3, 0x1000, v3")
    e("    buffer_load_dwordx4 v[76:79], v3, s[16:19], 0 offen")
    e("    v_and_b32 v4, 7, v0")
    e("    v_lshlrev_b32 v4, 1, v4")
    e("    v_add_u32 v4, s25, v4")
    e("    buffer_load_ushort v80, v4, s[36:39], 0 offen")
    e("    v_and_b32 v5, 127, v0")
    e("    v_lshrrev_b32 v6, 7, v0")
    e("    v_lshlrev_b32 v7, 3, v5")
    e("    buffer_load_dwordx2 v[82:83], v7, s[28:31], 0 offen")
    e("    v_lshlrev_b32 v7, 15, v6")
    e("    v_lshl_add_u32 v7, v5, 4, v7")
    e(f"    v_add_u32 v7, {WS_AP}, v7")
    for j in range(16):
        e(f"    buffer_load_dwordx4 v[{96+4*(j&7)}:{99+4*(j&7)}], v7, s[20:23], 0 offen offset:{(j&1)*2048}")
        if j & 1:
            e("    v_add_u32 v7, 0x1000, v7")
        if j == 7:
            e("    s_waitcnt vmcnt(0)")
            for k in range(4):
                e(f"    v_add_f32 v{16+k}, v{96+k}, v{100+k}")
            for jj in range(2, 8):
                for k in range(4):
                    e(f"    v_add_f32 v{16+k}, v{16+k}, v{96+4*jj+k}")
    e("    s_waitcnt vmcnt(0)")
    for jj in range(8):
        for k in range(4):
            e(f"    v_add_f32 v{16+k}, v{16+k}, v{96+4*jj+k}")
    e("    v_lshlrev_b32 v8, 4, v0")
    e("    ds_write_b128 v8, v[16:19]")
    e("    s_waitcnt lgkmcnt(0)")
    e("    s_barrier")
    e("    v_lshlrev_b32 v8, 5, v1")
    e("    ds_read_b128 v[16:19], v8")
    e("    ds_read_b128 v[20:23], v8 offset:16")
    e("    ds_read_b128 v[24:27], v8 offset:2048")
    e("    ds_read_b128 v[28:31], v8 offset:2064")
    e("    v_lshlrev_b32 v9, 4, v1")
    e("    buffer_load_dwordx4 v[84:87], v9, s[28:31], 0 offen")
    e("    s_waitcnt lgkmcnt(0) vmcnt(0)")
    for k in range(4):
        unpack(32+2*k, 33+2*k, 84+k)
    for k in range(8):
        e(f"    v_add_f32 v{16+k}, v{16+k}, v{24+k}")
        bf16r(16+k, 16+k)
        e(f"    v_add_f32 v{16+k}, v{16+k}, v{32+k}")
        bf16r(16+k, 16+k)
    e("    s_cmp_lg_u32 s2, 0")
    e("    s_cbranch_scc1 K4_NOH")
    e("    v_cmp_gt_u32 vcc, 64, v0")
    e("    s_and_saveexec_b64 s[40:41], vcc")
    e("    s_cbranch_execz K4_NOH2")
    e("    v_lshlrev_b32 v9, 5, v1")
    e(f"    v_add_u32 v9, {WS_H}, v9")
    e("    buffer_store_dwordx4 v[16:19], v9, s[20:23], 0 offen")
    e("    buffer_store_dwordx4 v[20:23], v9, s[20:23], 0 offen offset:16")
    e("K4_NOH2:")
    e("    s_mov_b64 exec, s[40:41]")
    e("K4_NOH:")
    layernorm8(16, 24, 42)
    e("    v_lshlrev_b32 v9, 11, v2")
    e("    v_lshl_add_u32 v10, v1, 5, v9")
    e("    ds_write_b128 v10, v[16:19] offset:4096")
    e("    ds_write_b128 v10, v[20:23] offset:4112")
    e("    v_lshl_add_u32 v10, v0, 2, v9")
    e("    s_waitcnt lgkmcnt(0)")
    e("    ds_read_b32 v24, v10 offset:4096")
    e("    ds_read_b32 v25, v10 offset:5120")
    e("    s_waitcnt lgkmcnt(0)")
    for k in range(4):
        unpack(26, 27, 64+k)
        e(f"    v_mul_f32 v{32+2*k}, v24, v26")
        e(f"    v_mul_f32 v{33+2*k}, v24, v27")
        unpack(26, 27, 68+k)
        e(f"    v_fmac_f32 v{32+2*k}, v25, v26")
        e(f"    v_fmac_f32 v{33+2*k}, v25, v27")
    for k in range(8):
        wave_sum(32+k, 44+k)
    e("    s_nop 1")
    for k in range(8):
        e(f"    v_writelane_b32 v40, s{44+k}, {k}")
    e("    v_lshlrev_b32 v10, 5, v2")
    e("    v_lshl_add_u32 v10, v1, 2, v10")
    e("    v_cmp_gt_u32 vcc, 8, v1")
    e("    s_and_saveexec_b64 s[40:41], vcc")
    e("    ds_write_b32 v10, v40 offset:12288")
    e("    s_mov_b64 exec, s[40:41]")
    e("    s_waitcnt lgkmcnt(0)")
    e("    s_barrier")
    e("    v_and_b32 v4, 7, v0")
    e("    v_lshlrev_b32 v10, 2, v4")
    for w in range(4):
        e(f"    ds_read_b32 v{24+w}, v10 offset:{12288+32*w}")
    e("    s_waitcnt lgkmcnt(0)")
    e("    v_add_f32 v24, v24, v25")
    e("    v_add_f32 v26, v26, v27")
    e("    v_add_f32 v24, v24, v26")
    bf16r(24, 24)
    e("    v_lshlrev_b32 v80, 16, v80")
    e("    v_add_f32 v24, v24, v80")
    bf16r(24, 24)
    e("    v_mul_f32 v25, v24, v24")
    e("    v_mul_f32 v25, v25, v24")
    e("    v_mov_b32 v26, 0x3d372713")
    e("    v_fma_f32 v25, v25, v26, v24")
    e("    v_mul_f32 v25, 0x3f4c422a, v25   ; u")
    e("    v_mul_f32 v25, 0x4038aa3b, v25   ; 2u*log2e")
    e("    v_exp_f32 v25, v25")
    e("    s_nop 0")
    e("    v_add_f32 v25, 1.0, v25")
    e("    v_rcp_f32 v25, v25")
    e("    s_nop 0")
    e("    v_fma_f32 v25, v25, -2.0, 2.0    ; 1+tanh")
    e("    v_mul_f32 v25, v25, v24")
    e("    v_mul_f32 v25, 0.5, v25")
    bf16r(25, 25)
    e("    v_readfirstlane_b32 s44, v2")
    e("    s_nop 3")
    e("    s_add_u32 s45, s44, 4")
    e("    v_readlane_b32 s46, v25, s44")
    e("    v_readlane_b32 s47, v25, s45")
    e("    s_nop 1")
    for k in range(4):
        unpack(26, 27, 72+k)
        e(f"    v_mul_f32 v{32+2*k}, s46, v26")
        e(f"    v_mul_f32 v{33+2*k}, s46, v27")
        unpack(26, 27, 76+k)
        e(f"    v_fmac_f32 v{32+2*k}, s47, v26")
        e(f"    v_fmac_f32 v{33+2*k}, s47, v27")
    e("    s_barrier")
    e("    v_lshlrev_b32 v10, 11, v2")
    e("    v_lshl_add_u32 v10, v1, 5, v10")
    e("    ds_write_b128 v10, v[32:35] offset:4096")
    e("    ds_write_b128 v10, v[36:39] offset:4112")
    e("    s_waitcnt lgkmcnt(0)")
    e("    s_barrier")
    e("    v_lshlrev_b32 v10, 3, v0")
    for w in range(4):
        e(f"    ds_read_b64 v[{16+2*w}:{17+2*w}], v10 offset:{4096+2048*w}")
    e("    s_waitcnt lgkmcnt(0)")
    for w in range(1, 4):
        e(f"    v_add_f32 v16, v16, v{16+2*w}")
        e(f"    v_add_f32 v17, v17, v{17+2*w}")
    e("    s_lshl_b32 s26, s2, 11")
    e(f"    s_add_u32 s26, s26, {WS_MP}")
    e("    v_add_u32 v10, s26, v10")
    e("    buffer_store_dwordx2 v[16:17], v10, s[20:23], 0 offen")
    e("K4_END:")
    e("    s_endpgm")

def k5():
    name = "k5_fin_kernel"
    kernels.append((name, 32, 256, 1024, 64))
    kstart(name)
    e("    s_cmp_ge_u32 s2, 32")
    e("    s_cbranch_scc1 K5_END")
    e(f"    s_load_dwordx2 s[4:5], s[0:1], {KA_B2}")
    e(f"    s_load_dwordx2 s[6:7], s[0:1], {KA_OUT}")
    e(f"    s_load_dwordx2 s[8:9], s[0:1], {KA_WS}")
    e("    s_waitcnt lgkmcnt(0)")
    srd(12, 4, 1024)
    srd(16, 6, 1024)
    srd(20, 8, WS_BYTES)
    e("    v_and_b32 v1, 15, v0")
    e("    v_lshrrev_b32 v2, 4, v0        ; part 0..15")
    e("    s_lshl_b32 s24, s2, 6")
    e(f"    s_add_u32 s24, s24, {WS_MP}")
    e("    v_mul_u32_u24 v3, 14*2048, v2")
    e("    v_lshl_add_u32 v3, v1, 2, v3")
    e("    v_add_u32 v3, s24, v3")
    for j in range(14):
        e(f"    buffer_load_dword v{16+j}, v3, s[20:23], 0 offen offset:{(j&1)*2048}")
        if j & 1:
            e("    v_add_u32 v3, 0x1000, v3")
    e("    s_lshl_b32 s25, s2, 4")
    e("    v_add_u32 v4, s25, v1          ; col")
    e("    v_lshlrev_b32 v5, 1, v4")
    e("    buffer_load_ushort v32, v5, s[12:15], 0 offen")
    e("    v_lshlrev_b32 v6, 2, v4")
    e(f"    v_add_u32 v6, {WS_H}, v6")
    e("    buffer_load_dword v33, v6, s[20:23], 0 offen")
    e("    s_waitcnt vmcnt(2)")
    for j in range(1, 14):
        e(f"    v_add_f32 v16, v16, v{16+j}")
    e("    v_lshlrev_b32 v7, 2, v0")
    e("    ds_write_b32 v7, v16")
    e("    s_waitcnt lgkmcnt(0)")
    e("    s_barrier")
    e("    v_cmp_gt_u32 vcc, 16, v0")
    e("    s_and_saveexec_b64 s[28:29], vcc")
    e("    s_cbranch_execz K5_END")
    for p in range(16):
        e(f"    ds_read_b32 v{16+p}, v7 offset:{64*p}")
    e("    s_waitcnt lgkmcnt(0) vmcnt(0)")
    for p in range(1, 16):
        e(f"    v_add_f32 v16, v16, v{16+p}")
    bf16r(16, 16)
    e("    v_lshlrev_b32 v32, 16, v32")
    e("    v_add_f32 v16, v16, v32")
    bf16r(16, 16)
    e("    v_add_f32 v16, v16, v33")
    e("    v_cvt_pk_bf16_f32 v16, v16, v16")
    e("    buffer_store_short v16, v5, s[16:19], 0 offen")
    e("K5_END:")
    e("    s_endpgm")

k1(); k2(); k3(); k4(); k5()

hdr = []
for (name, grid, block, lds, vg) in kernels:
    hdr.append(f"; @launch kernel={name} grid=({grid},1,1) block=({block},1,1) lds={lds}")
hdr.append('.amdgcn_target "amdgcn-amd-amdhsa--gfx950"')
hdr.append(".text")
tail = ['.section .rodata,"a"']
for (name, grid, block, lds, vg) in kernels:
    tail += [".p2align 6", f".amdhsa_kernel {name}",
             f"  .amdhsa_next_free_vgpr {vg}", "  .amdhsa_next_free_sgpr 96",
             f"  .amdhsa_accum_offset {vg}", "  .amdhsa_group_segment_fixed_size 0",
             "  .amdhsa_kernarg_size 104", "  .amdhsa_user_sgpr_count 2",
             "  .amdhsa_user_sgpr_kernarg_segment_ptr 1", "  .amdhsa_system_sgpr_workgroup_id_x 1",
             "  .amdhsa_float_denorm_mode_32 3",
             ".end_amdhsa_kernel"]
import re as _re
for _l in L:
    _m = _re.search(r"buffer_\w+.*offset:(\d+)", _l)
    assert not _m or int(_m.group(1)) < 4096, _l
open(OUT, "w").write("\n".join(hdr + L + tail) + "\n")
print("wrote", OUT, len(L), "lines")
```

```python
import sys, re
OUT = sys.argv[1] if len(sys.argv) > 1 else "sequential_preLN__sliding_block_cached__dense_activation_gelu__decode.s"
STAMP = len(sys.argv) > 2
KNAME = "sequential_preLN__sliding_block_cached__dense_activation_gelu__decode_kernel"
KA_X, KA_K, KA_V, KA_WQ, KA_WO, KA_BX, KA_W1, KA_B1, KA_W2, KA_B2, KA_OUT, KA_DBG, KA_WS = [8*i for i in range(13)]
WS_Q = 0
WS_OP = 0x10000
WS_ML = 0x90000
WS_AP = 0xA0000
WS_MP = 0xC0000
WS_ST = 0x140000
WS_BYTES = 0x180000
LD_LN = 0
LD_QP = 16384
LD_Q = 17408
LD_ML = 18432
LD_MISC = 19456
LD_O = 20480
LD_TOTAL = 20480 + 16384

L = []
def e(s=""):
    L.append("    " + s if not s.endswith(":") else s)
nstamp = [0]
def stamp():
    if STAMP:
        i = nstamp[0]; nstamp[0] += 1
        e(f"s_memrealtime s[{64+2*i}:{65+2*i}]")

def srd(dst, base_pair, nbytes):
    e(f"s_mov_b32 s{dst}, s{base_pair}")
    e(f"s_mov_b32 s{dst+1}, s{base_pair+1}")
    e(f"s_mov_b32 s{dst+2}, {nbytes}")
    e(f"s_mov_b32 s{dst+3}, 0x00020000")

def wave_sum(v, sdst):
    for sh in (1, 2, 4, 8):
        e("s_nop 1")
        e(f"v_add_f32_dpp v{v}, v{v}, v{v} row_shr:{sh} row_mask:0xf bank_mask:0xf bound_ctrl:0")
    e("s_nop 1")
    e(f"v_add_f32_dpp v{v}, v{v}, v{v} row_bcast:15 row_mask:0xa bank_mask:0xf")
    e("s_nop 1")
    e(f"v_add_f32_dpp v{v}, v{v}, v{v} row_bcast:31 row_mask:0xc bank_mask:0xf")
    e("s_nop 1")
    e(f"v_readlane_b32 s{sdst}, v{v}, 63")

def bf16r(dst, src):
    e(f"v_cvt_pk_bf16_f32 v{dst}, v{src}, v{src}")
    e(f"v_lshlrev_b32 v{dst}, 16, v{dst}")

def unpack(dlo, src):
    e(f"v_lshlrev_b32 v{dlo}, 16, v{src}")
    e(f"v_and_b32 v{dlo+1}, 0xffff0000, v{src}")

def layernorm8(xr, t0, s0):
    e(f"v_add_f32 v{t0}, v{xr}, v{xr+1}")
    for i in range(2, 8):
        e(f"v_add_f32 v{t0}, v{t0}, v{xr+i}")
    wave_sum(t0, s0)
    e("s_nop 1")
    e(f"v_mov_b32 v{t0}, s{s0}")
    e(f"v_mul_f32 v{t0}, 0x3b000000, v{t0}")
    e(f"v_sub_f32 v{t0+1}, v{xr}, v{t0}")
    e(f"v_mul_f32 v{t0+2}, v{t0+1}, v{t0+1}")
    for i in range(1, 8):
        e(f"v_sub_f32 v{t0+1}, v{xr+i}, v{t0}")
        e(f"v_fmac_f32 v{t0+2}, v{t0+1}, v{t0+1}")
    wave_sum(t0+2, s0+1)
    e("s_nop 1")
    e(f"v_mov_b32 v{t0+2}, s{s0+1}")
    e(f"v_mul_f32 v{t0+2}, 0x3b000000, v{t0+2}")
    bf16r(t0+2, t0+2)
    e(f"v_add_f32 v{t0+2}, 0x3727c5ac, v{t0+2}")
    bf16r(t0+2, t0+2)
    e(f"v_sqrt_f32 v{t0+2}, v{t0+2}")
    e("s_nop 0")
    bf16r(t0+2, t0+2)
    e(f"v_rcp_f32 v{t0+2}, v{t0+2}")
    bf16r(t0, t0)
    for i in range(8):
        e(f"v_sub_f32 v{xr+i}, v{xr+i}, v{t0}")
        bf16r(xr+i, xr+i)
        e(f"v_mul_f32 v{xr+i}, v{xr+i}, v{t0+2}")
        bf16r(xr+i, xr+i)

def rs32(regs):
    n = len(regs)//2
    e("s_nop 1")
    for i in range(n):
        e(f"v_permlane32_swap_b32 v{regs[i]}, v{regs[i+n]}")
    e("s_nop 1")
    for i in range(n):
        e(f"v_add_f32 v{regs[i]}, v{regs[i]}, v{regs[i+n]}")
    return regs[:n]
def rs16(regs):
    n = len(regs)//2
    e("s_nop 1")
    for i in range(n):
        e(f"v_permlane16_swap_b32 v{regs[i]}, v{regs[i+n]}")
    e("s_nop 1")
    for i in range(n):
        e(f"v_add_f32 v{regs[i]}, v{regs[i]}, v{regs[i+n]}")
    return regs[:n]

def flag_store(val):
    e(f"v_mov_b32 v4, {val}")
    e("v_mov_b32 v5, s30")
    e("global_store_byte v5, v4, s[40:41] sc1")

def poll(k, nlanes_dw, base_s, lbl):
    e(f"v_lshlrev_b32 v6, 2, v1")
    e(f"v_add_u32 v6, s{base_s}, v6")
    e("s_mov_b32 s63, 0x40000")
    if nlanes_dw < 64:
        e("s_mov_b64 exec, s[42:43]")
    e(f"{lbl}:")
    e("global_load_dword v7, v6, s[40:41] sc1")
    e("s_sub_u32 s63, s63, 1")
    e("s_cmp_eq_u32 s63, 0")
    e(f"s_cbranch_scc1 {lbl}_X")
    e("s_waitcnt vmcnt(0)")
    e("v_or_b32 v7, 0x80808080, v7")
    e(f"v_subrev_u32 v7, {k*0x01010101}, v7")
    e("v_and_b32 v7, 0x80808080, v7")
    e("v_cmp_ne_u32 vcc, 0x80808080, v7")
    e("s_nop 1")
    e(f"s_cbranch_vccnz {lbl}")
    e(f"{lbl}_X:")
    e("s_waitcnt vmcnt(0)")
    e("s_mov_b64 exec, -1")

e(f".globl {KNAME}")
e(".p2align 8")
e(f".type {KNAME},@function")
e(f"{KNAME}:")
stamp()
e("s_cmp_ge_u32 s2, 256")
e("s_cbranch_scc1 L_END")
e("s_load_dwordx16 s[44:59], s[0:1], 0     ; x,k,v,wq,wo,bx,w1,b1")
e("s_load_dwordx8 s[32:39], s[0:1], 64      ; w2,b2,out,dbg")
e(f"s_load_dwordx2 s[60:61], s[0:1], {KA_WS}")
e("v_and_b32 v1, 63, v0           ; lane")
e("v_lshrrev_b32 v2, 6, v0        ; wave")
e("s_and_b32 s28, s2, 7           ; g")
e("s_lshr_b32 s29, s2, 3          ; j")
e("s_lshl_b32 s30, s28, 5")
e("s_add_u32 s30, s30, s29")
e("v_readfirstlane_b32 s31, v2")
e("s_waitcnt lgkmcnt(0)")
e("s_mov_b32 s40, s38")
e("s_mov_b32 s41, s39")
srd(20, 60, WS_BYTES)
e("s_cmp_eq_u32 s31, 8")
e("s_cbranch_scc1 L_COMM")

srd(4, 44, 1024)
srd(8, 50, 512*4096*2)
e("s_lshl_b32 s24, s28, 24")
e("s_lshl_b32 s25, s29, 15")
e("s_add_u32 s24, s24, s25")
e(f"s_add_u32 s24, s24, {61440*256}")
e("s_add_u32 s12, s46, s24")
e("s_addc_u32 s13, s47, 0")
e("s_mov_b32 s14, 32768")
e("s_mov_b32 s15, 0x00020000")
e("s_add_u32 s16, s48, s24")
e("s_addc_u32 s17, s49, 0")
e("s_mov_b32 s18, 32768")
e("s_mov_b32 s19, 0x00020000")
e("v_lshlrev_b32 v3, 4, v1")
e("buffer_load_dwordx4 v[8:11], v3, s[4:7], 0 offen")
e("s_lshl_b32 s24, s28, 10")
e("s_lshl_b32 s25, s29, 5")
e("s_add_u32 s24, s24, s25")
e("v_lshrrev_b32 v4, 1, v1")
e("v_lshl_add_u32 v4, v2, 6, v4   ; row")
e("v_lshlrev_b32 v5, 13, v4")
e("v_and_b32 v6, 1, v1")
e("v_lshl_add_u32 v5, v6, 4, v5")
e("v_add_u32 v5, s24, v5")
e("buffer_load_dwordx4 v[12:15], v5, s[8:11], 0 offen")
e("v_add_u32 v5, 0x40000, v5")
e("buffer_load_dwordx4 v[16:19], v5, s[8:11], 0 offen")
e("v_and_b32 v6, 15, v1           ; l&15")
e("v_lshrrev_b32 v7, 4, v1        ; l>>4")
e("v_lshl_add_u32 v5, v2, 4, v6")
e("v_lshlrev_b32 v5, 8, v5")
e("v_lshl_add_u32 v5, v7, 4, v5")
for jj in range(4):
    e(f"buffer_load_dwordx4 v[{32+4*jj}:{35+4*jj}], v5, s[12:15], 0 offen offset:{64*jj}")
e("v_lshlrev_b32 v5, 4, v2")
e("v_lshl_add_u32 v5, v7, 2, v5")
e("v_lshlrev_b32 v5, 8, v5")
e("v_lshl_add_u32 v5, v6, 4, v5")
for r in range(4):
    e(f"buffer_load_dwordx4 v[{48+4*r}:{51+4*r}], v5, s[16:19], 0 offen offset:{256*r}")
srd(8, 52, 4096*512*2)
e("s_lshr_b32 s26, s29, 3")
e("s_lshl_b32 s27, s28, 2")
e("s_add_u32 s26, s26, s27        ; head h")
e("s_and_b32 s27, s29, 7          ; cb")
e("s_lshl_b32 s24, s26, 17")
e("s_lshl_b32 s25, s27, 7")
e("s_add_u32 s24, s24, s25")
e("v_lshrrev_b32 v5, 2, v0")
e("v_lshlrev_b32 v5, 10, v5")
e("v_and_b32 v3, 3, v0")
e("v_lshl_add_u32 v5, v3, 5, v5")
e("v_add_u32 v5, s24, v5")
e("buffer_load_dwordx4 v[64:67], v5, s[8:11], 0 offen")
e("buffer_load_dwordx4 v[68:71], v5, s[8:11], 0 offen offset:16")
e("s_mul_i32 s24, s28, 7")
e("s_lshr_b32 s25, s29, 2")
e("s_add_u32 s24, s24, s25")
e("s_lshl_b32 s24, s24, 5")
e("s_and_b32 s25, s29, 3")
e("s_lshl_b32 s25, s25, 3")
e("s_add_u32 s24, s24, s25")
e("s_cmp_lt_u32 s29, 28")
e("s_cselect_b32 s62, s24, 0      ; f0")
srd(8, 56, 512*1792*2)
e("s_lshl_b32 s24, s62, 1")
e("s_movk_i32 s25, 3584")
e("v_mul_lo_u32 v5, v0, s25")
e("v_add_u32 v5, s24, v5")
e("buffer_load_dwordx4 v[72:75], v5, s[8:11], 0 offen")
srd(12, 32, 1792*512*2)
e("s_lshl_b32 s25, s62, 10")
e("v_lshlrev_b32 v5, 10, v2")
e("v_lshl_add_u32 v5, v1, 4, v5")
e("v_add_u32 v5, s25, v5")
e("buffer_load_dwordx4 v[76:79], v5, s[12:15], 0 offen")
srd(16, 58, 1792*2)
e("v_and_b32 v5, 7, v0")
e("v_lshlrev_b32 v5, 1, v5")
e("v_add_u32 v5, s24, v5")
e("buffer_load_ushort v80, v5, s[16:19], 0 offen")
stamp()
e("s_waitcnt vmcnt(15)")
stamp()
for i in range(4):
    unpack(20+2*i, 8+i)
layernorm8(20, 28, 24)
e("v_lshlrev_b32 v81, 11, v2")
e("v_lshl_add_u32 v5, v1, 5, v81")
e("ds_write_b128 v5, v[20:23]")
e("ds_write_b128 v5, v[24:27] offset:16")
e("v_lshl_add_u32 v5, v4, 2, v81  ; ln[row]")
e("s_waitcnt lgkmcnt(0)")
e("ds_read_b32 v20, v5")
e("ds_read_b32 v21, v5 offset:128")
e("s_waitcnt lgkmcnt(0) vmcnt(13)")
stamp()
for k in range(4):
    unpack(30, 12+k)
    e(f"v_mul_f32 v{22+2*k}, v20, v30")
    e(f"v_mul_f32 v{23+2*k}, v20, v31")
for k in range(4):
    unpack(30, 16+k)
    e(f"v_fmac_f32 v{22+2*k}, v21, v30")
    e(f"v_fmac_f32 v{23+2*k}, v21, v31")
r4 = rs32(list(range(22, 30)))
r2 = rs16(r4)
for sh in (2, 4, 8):
    e("s_nop 1")
    for r in r2:
        e(f"v_add_f32_dpp v{r}, v{r}, v{r} row_shr:{sh} row_mask:0xf bank_mask:0xf bound_ctrl:0")
e("v_lshrrev_b32 v5, 5, v1")
e("v_lshlrev_b32 v5, 4, v5")
e("v_and_b32 v3, 1, v7")
e("v_lshl_add_u32 v5, v3, 3, v5")
e("v_and_b32 v3, 1, v1")
e("v_lshl_add_u32 v5, v3, 5, v5")
e("v_lshl_add_u32 v5, v2, 6, v5   ; + w*64")
e("v_cmp_le_u32 vcc, 14, v6")
e("s_and_saveexec_b64 s[24:25], vcc")
e(f"ds_write_b64 v5, v[{r2[0]}:{r2[1]}] offset:{LD_QP}")
e("s_mov_b64 exec, s[24:25]")
e("s_waitcnt lgkmcnt(0)")
e("s_barrier                      ; B1")
e("s_barrier")
stamp()
e("v_and_b32 v3, 3, v1")
e("v_lshlrev_b32 v5, 8, v3")
e("v_lshl_add_u32 v5, v7, 4, v5")
for jj in range(4):
    e(f"ds_read_b128 v[{8+4*jj}:{11+4*jj}], v5 offset:{LD_Q+64*jj}")
e("s_waitcnt lgkmcnt(0) vmcnt(9)")
stamp()
for jj in range(4):
    c = "0" if jj == 0 else "v[24:27]"
    e(f"v_mfma_f32_16x16x32_bf16 v[24:27], v[{32+4*jj}:{35+4*jj}], v[{8+4*jj}:{11+4*jj}], {c}")
e("v_mov_b32 v28, 0x3db504f3")
e("s_nop 7")
for i in range(4):
    bf16r(24+i, 24+i)
    e(f"v_mul_f32 v{24+i}, v{24+i}, v28")
    bf16r(24+i, 24+i)
e("v_max_f32 v30, v24, v25")
e("v_max3_f32 v30, v30, v26, v27")
e("v_mov_b32 v31, v30")
e("s_nop 1")
e("v_permlane16_swap_b32 v30, v31")
e("s_nop 1")
e("v_max_f32 v30, v30, v31")
e("v_mov_b32 v31, v30")
e("s_nop 1")
e("v_permlane32_swap_b32 v30, v31")
e("s_nop 1")
e("v_max_f32 v30, v30, v31")
for i in range(4):
    e(f"v_sub_f32 v{24+i}, v{24+i}, v30")
    e(f"v_mul_f32 v{24+i}, 0x3fb8aa3b, v{24+i}")
    e(f"v_exp_f32 v{24+i}, v{24+i}")
e("s_nop 0")
e("v_add_f32 v31, v24, v25")
e("v_add_f32 v28, v26, v27")
e("v_add_f32 v31, v31, v28")
e("v_mov_b32 v28, v31")
e("s_nop 1")
e("v_permlane16_swap_b32 v31, v28")
e("s_nop 1")
e("v_add_f32 v31, v31, v28")
e("v_mov_b32 v28, v31")
e("s_nop 1")
e("v_permlane32_swap_b32 v31, v28")
e("s_nop 1")
e("v_add_f32 v31, v31, v28         ; l_w")
e("v_lshlrev_b32 v5, 5, v2")
e("v_lshl_add_u32 v5, v3, 3, v5")
e(f"ds_write_b64 v5, v[30:31] offset:{LD_ML}")
for k in range(32):
    e(f"v_mov_b32 v{84+k}, 0")
for r in range(4):
    e(f"s_waitcnt vmcnt({8-r})")
    for k in range(4):
        unpack(8+2*k, 48+4*r+k)
    for h in range(4):
        e(f"v_mov_b32_dpp v{16+2*h}, v{24+r} quad_perm:[{h},{h},{h},{h}] row_mask:0xf bank_mask:0xf")
    for h in range(4):
        for k in range(4):
            a = 84+8*h+2*k
            e(f"v_pk_fma_f32 v[{a}:{a+1}], v[{8+2*k}:{9+2*k}], v[{16+2*h}:{17+2*h}], v[{a}:{a+1}] op_sel_hi:[1,0,1]")
stamp()
ra = rs32(list(range(84, 116)))
rb = rs16(ra)
e("v_lshl_add_u32 v5, v1, 5, v81")
e(f"ds_write_b128 v5, v[84:87] offset:{LD_O}")
e(f"ds_write_b128 v5, v[88:91] offset:{LD_O+16}")
e("s_waitcnt lgkmcnt(0)")
e("s_barrier                      ; B3")
e("v_lshrrev_b32 v3, 7, v0")
e("v_lshlrev_b32 v5, 3, v3")
for w in range(8):
    e(f"ds_read_b64 v[{8+2*w}:{9+2*w}], v5 offset:{LD_ML+32*w}")
e("v_lshlrev_b32 v5, 2, v0")
for w in range(8):
    e(f"ds_read_b32 v{24+w}, v5 offset:{LD_O+2048*w}")
e("s_waitcnt lgkmcnt(8)")
e("v_max3_f32 v32, v8, v10, v12")
e("v_max3_f32 v33, v14, v16, v18")
e("v_max3_f32 v32, v32, v20, v22")
e("v_max_f32 v32, v32, v33         ; M")
for w in range(8):
    e(f"v_sub_f32 v{8+2*w}, v{8+2*w}, v32")
    e(f"v_mul_f32 v{8+2*w}, 0x3fb8aa3b, v{8+2*w}")
    e(f"v_exp_f32 v{8+2*w}, v{8+2*w}")
e("s_waitcnt lgkmcnt(0)")
e("v_mul_f32 v34, v8, v24")
e("v_mul_f32 v33, v8, v9")
for w in range(1, 8):
    e(f"v_fmac_f32 v34, v{8+2*w}, v{24+w}")
    e(f"v_fmac_f32 v33, v{8+2*w}, v{9+2*w}")
e("s_lshl_b32 s24, s30, 11")
e(f"s_add_u32 s24, s24, {WS_OP}")
e("v_add_u32 v5, s24, v5")
e("buffer_store_dword v34, v5, s[20:23], 0 offen sc1")
e("v_and_b32 v4, 127, v0")
e("v_cmp_eq_u32 vcc, 0, v4")
e("s_and_saveexec_b64 s[24:25], vcc")
e("s_lshl_b32 s26, s30, 5")
e(f"s_add_u32 s26, s26, {WS_ML}")
e("v_lshlrev_b32 v5, 3, v3")
e("v_add_u32 v5, s26, v5")
e("buffer_store_dwordx2 v[32:33], v5, s[20:23], 0 offen sc1")
e("s_mov_b64 exec, s[24:25]")
e("s_waitcnt vmcnt(0)")
stamp()
e("s_barrier")
e("s_barrier")
stamp()
e("s_lshr_b32 s26, s29, 3         ; h&3")
e("s_lshl_b32 s24, s28, 10")
e("s_lshl_b32 s25, s26, 3")
e("s_add_u32 s24, s24, s25")
e(f"s_add_u32 s24, s24, {WS_ML}")
e("v_and_b32 v4, 31, v1")
e("v_lshlrev_b32 v5, 5, v4")
e("v_add_u32 v5, s24, v5")
e("buffer_load_dwordx2 v[8:9], v5, s[20:23], 0 offen sc1")
e("s_lshl_b32 s24, s28, 16")
e("s_lshl_b32 s25, s26, 9")
e("s_add_u32 s24, s24, s25")
e(f"s_add_u32 s24, s24, {WS_OP}")
e("v_and_b32 v3, 31, v0")
e("v_lshrrev_b32 v10, 5, v0       ; cg")
e("v_lshlrev_b32 v5, 12, v10")
e("v_lshl_add_u32 v5, v3, 4, v5")
e("v_add_u32 v5, s24, v5")
e("buffer_load_dwordx4 v[12:15], v5, s[20:23], 0 offen sc1")
e("buffer_load_dwordx4 v[16:19], v5, s[20:23], 0 offen offset:2048 sc1")
e("s_waitcnt vmcnt(2)")
e("v_mov_b32 v20, v8")
for sh in (1, 2, 4, 8):
    e("s_nop 1")
    e(f"v_max_f32_dpp v20, v20, v20 row_shr:{sh} row_mask:0xf bank_mask:0xf")
e("s_nop 1")
e("v_readlane_b32 s24, v20, 15")
e("v_readlane_b32 s25, v20, 31")
e("s_nop 1")
e("v_mov_b32 v20, s24")
e("v_max_f32 v20, s25, v20")
e("v_sub_f32 v21, v8, v20")
e("v_mul_f32 v21, 0x3fb8aa3b, v21")
e("v_exp_f32 v21, v21")
e("s_nop 0")
e("v_mul_f32 v22, v21, v9")
for sh in (1, 2, 4, 8):
    e("s_nop 1")
    e(f"v_add_f32_dpp v22, v22, v22 row_shr:{sh} row_mask:0xf bank_mask:0xf bound_ctrl:0")
e("s_nop 1")
e("v_readlane_b32 s24, v22, 15")
e("v_readlane_b32 s25, v22, 31")
e("s_nop 1")
e("v_mov_b32 v22, s24")
e("v_add_f32 v22, s25, v22")
e("v_rcp_f32 v22, v22")
e("s_nop 0")
e("v_mul_f32 v21, v21, v22")
e("v_lshlrev_b32 v23, 3, v10")
e("v_and_b32 v23, 127, v23")
e("ds_bpermute_b32 v24, v23, v21")
e("v_add_u32 v23, 4, v23")
e("ds_bpermute_b32 v25, v23, v21")
e("s_waitcnt lgkmcnt(0) vmcnt(0)")
for k in range(4):
    e(f"v_mul_f32 v{12+k}, v24, v{12+k}")
    e(f"v_fmac_f32 v{12+k}, v25, v{16+k}")
for k in range(4):
    e(f"v_mov_b32 v{16+k}, v{12+k}")
e("s_nop 1")
for k in range(4):
    e(f"v_permlane32_swap_b32 v{12+k}, v{16+k}")
e("s_nop 1")
for k in range(4):
    e(f"v_add_f32 v{12+k}, v{12+k}, v{16+k}")
e("v_lshlrev_b32 v5, 9, v2")
e("v_lshl_add_u32 v5, v3, 4, v5")
e(f"ds_write_b128 v5, v[12:15] offset:{LD_O}")
e("s_waitcnt lgkmcnt(0)")
e("s_barrier                      ; B6")
e("v_lshrrev_b32 v4, 2, v0")
e("v_lshlrev_b32 v5, 2, v4")
for w in range(8):
    e(f"ds_read_b32 v{8+w}, v5 offset:{LD_O+512*w}")
e("s_waitcnt lgkmcnt(0)")
e("v_add_f32 v8, v8, v9")
e("v_add_f32 v10, v10, v11")
e("v_add_f32 v12, v12, v13")
e("v_add_f32 v14, v14, v15")
e("v_add_f32 v8, v8, v10")
e("v_add_f32 v12, v12, v14")
e("v_add_f32 v8, v8, v12")
bf16r(8, 8)
for k in range(8):
    unpack(16+2*k, 64+k)
for k in range(16):
    e(f"v_mul_f32 v{16+k}, v8, v{16+k}")
r8 = rs32(list(range(16, 32)))
r4 = rs16(r8)
for sh in (4, 8):
    e("s_nop 1")
    for r in r4:
        e(f"v_add_f32_dpp v{r}, v{r}, v{r} row_shr:{sh} row_mask:0xf bank_mask:0xf bound_ctrl:0")
e("v_and_b32 v3, 3, v1")
e("v_lshlrev_b32 v5, 6, v3")
e("v_lshrrev_b32 v4, 5, v1")
e("v_lshl_add_u32 v5, v4, 5, v5")
e("v_and_b32 v4, 1, v7")
e("v_lshl_add_u32 v5, v4, 4, v5")
e("v_lshl_add_u32 v5, v2, 8, v5")
e("v_cmp_le_u32 vcc, 12, v6")
e("s_and_saveexec_b64 s[24:25], vcc")
e(f"ds_write_b128 v5, v[{r4[0]}:{r4[3]}] offset:{LD_LN}")
e("s_mov_b64 exec, s[24:25]")
e("s_waitcnt lgkmcnt(0)")
e("s_barrier                      ; B7")
e("s_cmp_lg_u32 s31, 0")
e("s_cbranch_scc1 L_O_SKIP")
e("v_lshlrev_b32 v5, 2, v1")
for w in range(8):
    e(f"ds_read_b32 v{8+w}, v5 offset:{LD_LN+256*w}")
e("s_waitcnt lgkmcnt(0)")
for w in range(1, 8):
    e(f"v_add_f32 v8, v8, v{8+w}")
e("s_lshl_b32 s24, s28, 2")
e("s_add_u32 s24, s24, s26        ; head")
e("s_lshl_b32 s24, s24, 11")
e("s_lshl_b32 s25, s27, 8")
e("s_add_u32 s24, s24, s25")
e(f"s_add_u32 s24, s24, {WS_AP}")
e("v_add_u32 v5, s24, v5")
e("buffer_store_dword v8, v5, s[20:23], 0 offen sc1")
e("s_waitcnt vmcnt(0)")
e("L_O_SKIP:")
stamp()
e("s_barrier                      ; B8 -> flag 3")
e("s_barrier")
stamp()
e("v_and_b32 v3, 127, v0")
e("v_lshrrev_b32 v4, 7, v0        ; part")
e("v_lshlrev_b32 v5, 14, v4")
e("v_lshl_add_u32 v5, v3, 4, v5")
e(f"v_add_u32 v5, {WS_AP}, v5")
for i in range(8):
    e(f"buffer_load_dwordx4 v[{8+4*i}:{11+4*i}], v5, s[20:23], 0 offen offset:{(i&1)*2048} sc1")
    if i & 1 and i < 7:
        e("v_add_u32 v5, 0x1000, v5")
e("v_lshlrev_b32 v5, 4, v1")
e("buffer_load_dwordx4 v[40:43], v5, s[4:7], 0 offen   ; x cols 8l..8l+7")
e("s_waitcnt vmcnt(1)")
for i in range(1, 8):
    for k in range(4):
        e(f"v_add_f32 v{8+k}, v{8+k}, v{8+4*i+k}")
e("v_lshlrev_b32 v5, 4, v0")
e(f"ds_write_b128 v5, v[8:11] offset:{LD_O}")
e("s_waitcnt lgkmcnt(0)")
e("s_barrier                      ; B10")
e("v_lshlrev_b32 v5, 5, v1")
for p in range(4):
    e(f"ds_read_b128 v[{8+8*p}:{11+8*p}], v5 offset:{LD_O+2048*p}")
    e(f"ds_read_b128 v[{12+8*p}:{15+8*p}], v5 offset:{LD_O+2048*p+16}")
e("s_waitcnt lgkmcnt(0) vmcnt(0)")
for k in range(4):
    unpack(44+2*k, 40+k)
for k in range(8):
    e(f"v_add_f32 v{8+k}, v{8+k}, v{16+k}")
    e(f"v_add_f32 v{24+k}, v{24+k}, v{32+k}")
    e(f"v_add_f32 v{8+k}, v{8+k}, v{24+k}")
    bf16r(8+k, 8+k)
    e(f"v_add_f32 v{8+k}, v{8+k}, v{44+k}")
    bf16r(8+k, 8+k)
    e(f"v_mov_b32 v{84+k}, v{8+k}     ; keep h")
layernorm8(8, 16, 24)
e("v_lshl_add_u32 v5, v1, 5, v81")
e("ds_write_b128 v5, v[8:11]")
e("ds_write_b128 v5, v[12:15] offset:16")
e("v_lshl_add_u32 v5, v0, 2, v81   ; ln2[t] (t = w*64+l)")
e("s_waitcnt lgkmcnt(0)")
e("ds_read_b32 v16, v5")
for k in range(4):
    unpack(20+2*k, 72+k)
e("s_waitcnt lgkmcnt(0)")
for k in range(8):
    e(f"v_mul_f32 v{20+k}, v16, v{20+k}")
q4 = rs32(list(range(20, 28)))
q2 = rs16(q4)
for sh in (1, 2, 4, 8):
    e("s_nop 1")
    for r in q2:
        e(f"v_add_f32_dpp v{r}, v{r}, v{r} row_shr:{sh} row_mask:0xf bank_mask:0xf bound_ctrl:0")
e("v_lshrrev_b32 v4, 5, v1")
e("v_lshlrev_b32 v5, 4, v4")
e("v_and_b32 v4, 1, v7")
e("v_lshl_add_u32 v5, v4, 3, v5")
e("v_lshl_add_u32 v5, v2, 5, v5")
e("v_cmp_eq_u32 vcc, 15, v6")
e("s_and_saveexec_b64 s[24:25], vcc")
e(f"ds_write_b64 v5, v[{q2[0]}:{q2[1]}] offset:{LD_MISC}")
e("s_mov_b64 exec, s[24:25]")
e("s_waitcnt lgkmcnt(0)")
e("s_barrier                      ; B11")
e("v_and_b32 v4, 7, v0")
e("v_lshlrev_b32 v5, 2, v4")
for w in range(8):
    e(f"ds_read_b32 v{8+w}, v5 offset:{LD_MISC+32*w}")
e("s_waitcnt lgkmcnt(0)")
e("v_add_f32 v8, v8, v9")
e("v_add_f32 v10, v10, v11")
e("v_add_f32 v12, v12, v13")
e("v_add_f32 v14, v14, v15")
e("v_add_f32 v8, v8, v10")
e("v_add_f32 v12, v12, v14")
e("v_add_f32 v8, v8, v12")
bf16r(8, 8)
e("v_lshlrev_b32 v80, 16, v80")
e("v_add_f32 v8, v8, v80")
bf16r(8, 8)
e("v_mul_f32 v9, v8, v8")
e("v_mul_f32 v9, v9, v8")
e("v_mov_b32 v10, 0x3d372713")
e("v_fma_f32 v9, v9, v10, v8")
e("v_mul_f32 v9, 0x3f4c422a, v9")
e("v_mul_f32 v9, 0x4038aa3b, v9")
e("v_exp_f32 v9, v9")
e("s_nop 0")
e("v_add_f32 v9, 1.0, v9")
e("v_rcp_f32 v9, v9")
e("s_nop 0")
e("v_fma_f32 v9, v9, -2.0, 2.0")
e("v_mul_f32 v9, v9, v8")
e("v_mul_f32 v9, 0.5, v9")
bf16r(9, 9)
e("s_nop 0")
e("v_readlane_b32 s24, v9, s31     ; g[w]")
for k in range(4):
    unpack(16+2*k, 76+k)
e("s_nop 1")
for k in range(8):
    e(f"v_mul_f32 v{16+k}, s24, v{16+k}")
e("v_lshl_add_u32 v5, v1, 5, v81")
e(f"ds_write_b128 v5, v[16:19] offset:{LD_O}")
e(f"ds_write_b128 v5, v[20:23] offset:{LD_O+16}")
e("s_waitcnt lgkmcnt(0)")
e("s_barrier                      ; B12")
e("v_lshlrev_b32 v5, 2, v0")
for w in range(8):
    e(f"ds_read_b32 v{8+w}, v5 offset:{LD_O+2048*w}")
e("s_waitcnt lgkmcnt(0)")
e("v_add_f32 v8, v8, v9")
e("v_add_f32 v10, v10, v11")
e("v_add_f32 v12, v12, v13")
e("v_add_f32 v14, v14, v15")
e("v_add_f32 v8, v8, v10")
e("v_add_f32 v12, v12, v14")
e("v_add_f32 v8, v8, v12")
e("s_cmp_ge_u32 s29, 28")
e("s_cbranch_scc1 L_M_SKIP")
e("s_mul_i32 s24, s28, 28")
e("s_add_u32 s24, s24, s29")
e("s_lshl_b32 s24, s24, 11")
e(f"s_add_u32 s24, s24, {WS_MP}")
e("v_add_u32 v5, s24, v5")
e("buffer_store_dword v8, v5, s[20:23], 0 offen sc1")
e("s_waitcnt vmcnt(0)")
e("L_M_SKIP:")
stamp()
e("s_barrier                      ; B13 -> flag 4")
e("s_cmp_ge_u32 s2, 128")
e("s_cbranch_scc1 L_FIN")
e("s_barrier")
stamp()
e("s_cmp_ge_u32 s31, 4")
e("s_cbranch_scc1 L_F_NOLOAD")
e("v_mov_b32 v8, 0")
e("v_mov_b32 v9, 0")
e("v_mov_b32 v10, 0")
e("v_mov_b32 v11, 0")
e("s_lshl_b32 s24, s2, 4")
e(f"s_add_u32 s24, s24, {WS_MP}")
e("v_lshlrev_b32 v5, 11, v0")
e("v_add_u32 v5, s24, v5")
e("v_cmp_gt_u32 vcc, 224, v0")
e("s_and_saveexec_b64 s[24:25], vcc")
e("buffer_load_dwordx4 v[8:11], v5, s[20:23], 0 offen sc1")
e("s_mov_b64 exec, s[24:25]")
e("s_waitcnt vmcnt(0)")
f2 = rs32([8, 9, 10, 11])
f1 = rs16(f2)
for sh in (1, 2, 4, 8):
    e("s_nop 1")
    e(f"v_add_f32_dpp v8, v8, v8 row_shr:{sh} row_mask:0xf bank_mask:0xf bound_ctrl:0")
e("v_lshrrev_b32 v4, 5, v1")
e("v_lshlrev_b32 v5, 3, v4")
e("v_and_b32 v4, 1, v7")
e("v_lshl_add_u32 v5, v4, 2, v5")
e("v_lshl_add_u32 v5, v2, 4, v5")
e("v_cmp_eq_u32 vcc, 15, v6")
e("s_and_saveexec_b64 s[24:25], vcc")
e(f"ds_write_b32 v5, v8 offset:{LD_MISC+512}")
e("s_mov_b64 exec, s[24:25]")
e("L_F_NOLOAD:")
e("s_cmp_lg_u32 s31, 0")
e("s_cbranch_scc1 L_F_NOH")
e("v_lshlrev_b32 v5, 5, v1")
e(f"ds_write_b128 v5, v[84:87] offset:{LD_LN}")
e(f"ds_write_b128 v5, v[88:91] offset:{LD_LN+16}")
e("L_F_NOH:")
e("s_waitcnt lgkmcnt(0)")
e("s_barrier                      ; B15")
e("s_cmp_lg_u32 s31, 0")
e("s_cbranch_scc1 L_FIN")
e("v_cmp_gt_u32 vcc, 4, v0")
e("s_and_saveexec_b64 s[24:25], vcc")
e("s_cbranch_execz L_FIN")
srd(8, 34, 1024)
srd(12, 36, 1024)
e("s_lshl_b32 s26, s2, 2")
e("v_add_u32 v4, s26, v0           ; col")
e("v_lshlrev_b32 v3, 1, v4")
e("buffer_load_ushort v20, v3, s[8:11], 0 offen")
e("v_lshlrev_b32 v5, 2, v0")
for w in range(4):
    e(f"ds_read_b32 v{8+w}, v5 offset:{LD_MISC+512+16*w}")
e("v_lshlrev_b32 v5, 2, v4")
e(f"ds_read_b32 v12, v5 offset:{LD_LN}")
e("s_waitcnt lgkmcnt(0) vmcnt(0)")
e("v_add_f32 v8, v8, v9")
e("v_add_f32 v10, v10, v11")
e("v_add_f32 v8, v8, v10")
bf16r(8, 8)
e("v_lshlrev_b32 v20, 16, v20")
e("v_add_f32 v8, v8, v20")
bf16r(8, 8)
e("v_add_f32 v8, v8, v12")
e("v_cvt_pk_bf16_f32 v8, v8, v8")
e("buffer_store_short v8, v3, s[12:15], 0 offen")
e("L_FIN:")
stamp()
if STAMP:
    n = nstamp[0]
    e("s_mov_b64 exec, -1")
    e("s_cmp_lg_u32 s31, 0")
    e("s_cbranch_scc1 L_END")
    e("v_cmp_eq_u32 vcc, 0, v0")
    e("s_and_saveexec_b64 s[24:25], vcc")
    e("s_lshl_b32 s24, s2, 7")
    e(f"s_add_u32 s24, s24, {WS_ST}")
    e("v_mov_b32 v1, s24")
    e("s_waitcnt lgkmcnt(0)")
    for i in range(n):
        e(f"v_mov_b32 v2, s{64+2*i}")
        e(f"v_mov_b32 v3, s{65+2*i}")
        e(f"buffer_store_dwordx2 v[2:3], v1, s[20:23], 0 offen offset:{8*i}")
        e("s_nop 1")
e("s_endpgm")

e("L_COMM:")
e("v_cmp_gt_u32 s[42:43], 8, v1")
e("s_barrier                      ; B1")
e("v_and_b32 v3, 15, v1")
e("v_lshlrev_b32 v5, 2, v3")
for w in range(8):
    e(f"ds_read_b32 v{8+w}, v5 offset:{LD_QP+64*w}")
e("s_waitcnt lgkmcnt(0)")
for w in range(1, 8):
    e(f"v_add_f32 v8, v8, v{8+w}")
e("v_cvt_pk_bf16_f32 v8, v8, v8")
e("s_lshl_b32 s24, s30, 5          ; (g*512 + j*16)*2")
e("v_lshlrev_b32 v5, 1, v3")
e("v_add_u32 v5, s24, v5")
e(f"v_cmp_gt_u32 vcc, 16, v1")
e("s_and_saveexec_b64 s[24:25], vcc")
e("buffer_store_short v8, v5, s[20:23], 0 offen sc1")
e("s_mov_b64 exec, s[24:25]")
e("s_waitcnt vmcnt(0)")
flag_store(1)
e("s_lshl_b32 s24, s28, 5")
poll(1, 8, 24, "L_P1")
e("s_lshl_b32 s24, s28, 10")
e("v_lshlrev_b32 v5, 4, v1")
e("v_add_u32 v6, s24, v5")
e("buffer_load_dwordx4 v[8:11], v6, s[20:23], 0 offen sc1")
e("s_waitcnt vmcnt(0)")
e(f"ds_write_b128 v5, v[8:11] offset:{LD_Q}")
e("s_waitcnt lgkmcnt(0)")
e("s_barrier                      ; B2")
e("s_barrier                      ; B3")
e("s_barrier                      ; B4")
flag_store(2)
e("s_lshl_b32 s24, s28, 5")
poll(2, 8, 24, "L_P2")
e("s_barrier                      ; B5")
e("s_barrier                      ; B6")
e("s_barrier                      ; B7")
e("s_barrier                      ; B8")
flag_store(3)
e("s_mov_b32 s24, 0")
poll(3, 64, 24, "L_P3")
e("s_barrier                      ; B9")
e("s_barrier                      ; B10")
e("s_barrier                      ; B11")
e("s_barrier                      ; B12")
e("s_barrier                      ; B13")
flag_store(4)
e("s_cmp_ge_u32 s2, 128")
e("s_cbranch_scc1 L_END")
e("s_mov_b32 s24, 0")
poll(4, 64, 24, "L_P4")
e("s_barrier                      ; B14")
e("s_barrier                      ; B15")
e("L_END:")
e("s_endpgm")

for _l in L:
    _m = re.search(r"buffer_\w+.*offset:(\d+)", _l)
    assert not _m or int(_m.group(1)) < 4096, _l
hdr = [f"; @launch grid=(256,1,1) block=(576,1,1) lds={LD_TOTAL}",
       '.amdgcn_target "amdgcn-amd-amdhsa--gfx950"', ".text"]
tail = ['.section .rodata,"a"', ".p2align 6", f".amdhsa_kernel {KNAME}",
        "  .amdhsa_next_free_vgpr 120", "  .amdhsa_next_free_sgpr 100",
        "  .amdhsa_accum_offset 120", "  .amdhsa_group_segment_fixed_size 0",
        "  .amdhsa_kernarg_size 104", "  .amdhsa_user_sgpr_count 2",
        "  .amdhsa_user_sgpr_kernarg_segment_ptr 1", "  .amdhsa_system_sgpr_workgroup_id_x 1",
        "  .amdhsa_float_denorm_mode_32 3", ".end_amdhsa_kernel"]
open(OUT, "w").write("\n".join(hdr + L + tail) + "\n")
print("wrote", OUT, len(L), "lines; stamps", nstamp[0])
```

```python
import sys, re
OUT = sys.argv[1] if len(sys.argv) > 1 else "sequential_preLN__sliding_block_cached__dense_activation_gelu__decode.s"
STAMP = len(sys.argv) > 2
DBGST = len(sys.argv) > 2 and sys.argv[2] == "dbg"
NT = " nt" if "nt" in sys.argv[3:] else ""
KNAME = "sequential_preLN__sliding_block_cached__dense_activation_gelu__decode_kernel"
KA_X, KA_K, KA_V, KA_WQ, KA_WO, KA_BX, KA_W1, KA_B1, KA_W2, KA_B2, KA_OUT, KA_DBG, KA_WS = [8*i for i in range(13)]
WS_Q = 0
WS_OP = 0x10000
WS_ML = 0x90000
WS_AP = 0xA0000
WS_MP = 0xC0000
WS_ST = 0x140000
WS_BYTES = 0x180000
LD_LN = 0
LD_QP = 16384
LD_Q = 17408
LD_ML = 18432
LD_MISC = 19456
LD_O = 20480
LD_TOTAL = 20480 + 16384

L = []
def e(s=""):
    L.append("    " + s if not s.endswith(":") else s)
nstamp = [0]
def stamp():
    if STAMP:
        i = nstamp[0]; nstamp[0] += 1
        e(f"s_memrealtime s[{64+2*i}:{65+2*i}]")

def srd(dst, base_pair, nbytes):
    e(f"s_mov_b32 s{dst}, s{base_pair}")
    e(f"s_mov_b32 s{dst+1}, s{base_pair+1}")
    e(f"s_mov_b32 s{dst+2}, {nbytes}")
    e(f"s_mov_b32 s{dst+3}, 0x00020000")

def wave_sum(v, sdst):
    for sh in (1, 2, 4, 8):
        e("s_nop 1")
        e(f"v_add_f32_dpp v{v}, v{v}, v{v} row_shr:{sh} row_mask:0xf bank_mask:0xf bound_ctrl:0")
    e("s_nop 1")
    e(f"v_add_f32_dpp v{v}, v{v}, v{v} row_bcast:15 row_mask:0xa bank_mask:0xf")
    e("s_nop 1")
    e(f"v_add_f32_dpp v{v}, v{v}, v{v} row_bcast:31 row_mask:0xc bank_mask:0xf")
    e("s_nop 1")
    e(f"v_readlane_b32 s{sdst}, v{v}, 63")

def bf16r(dst, src):
    e(f"v_cvt_pk_bf16_f32 v{dst}, v{src}, v{src}")
    e(f"v_lshlrev_b32 v{dst}, 16, v{dst}")

def unpack(dlo, src):
    e(f"v_lshlrev_b32 v{dlo}, 16, v{src}")
    e(f"v_and_b32 v{dlo+1}, 0xffff0000, v{src}")

def layernorm8(xr, t0, s0):
    e(f"v_add_f32 v{t0}, v{xr}, v{xr+1}")
    for i in range(2, 8):
        e(f"v_add_f32 v{t0}, v{t0}, v{xr+i}")
    wave_sum(t0, s0)
    e("s_nop 1")
    e(f"v_mov_b32 v{t0}, s{s0}")
    e(f"v_mul_f32 v{t0}, 0x3b000000, v{t0}")
    e(f"v_sub_f32 v{t0+1}, v{xr}, v{t0}")
    e(f"v_mul_f32 v{t0+2}, v{t0+1}, v{t0+1}")
    for i in range(1, 8):
        e(f"v_sub_f32 v{t0+1}, v{xr+i}, v{t0}")
        e(f"v_fmac_f32 v{t0+2}, v{t0+1}, v{t0+1}")
    wave_sum(t0+2, s0+1)
    e("s_nop 1")
    e(f"v_mov_b32 v{t0+2}, s{s0+1}")
    e(f"v_mul_f32 v{t0+2}, 0x3b000000, v{t0+2}")
    bf16r(t0+2, t0+2)
    e(f"v_add_f32 v{t0+2}, 0x3727c5ac, v{t0+2}")
    bf16r(t0+2, t0+2)
    e(f"v_sqrt_f32 v{t0+2}, v{t0+2}")
    e("s_nop 0")
    bf16r(t0+2, t0+2)
    e(f"v_rcp_f32 v{t0+2}, v{t0+2}")
    bf16r(t0, t0)
    for i in range(8):
        e(f"v_sub_f32 v{xr+i}, v{xr+i}, v{t0}")
        bf16r(xr+i, xr+i)
        e(f"v_mul_f32 v{xr+i}, v{xr+i}, v{t0+2}")
        bf16r(xr+i, xr+i)

def rs32(regs):
    n = len(regs)//2
    e("s_nop 1")
    for i in range(n):
        e(f"v_permlane32_swap_b32 v{regs[i]}, v{regs[i+n]}")
    e("s_nop 1")
    for i in range(n):
        e(f"v_add_f32 v{regs[i]}, v{regs[i]}, v{regs[i+n]}")
    return regs[:n]
def rs16(regs):
    n = len(regs)//2
    e("s_nop 1")
    for i in range(n):
        e(f"v_permlane16_swap_b32 v{regs[i]}, v{regs[i+n]}")
    e("s_nop 1")
    for i in range(n):
        e(f"v_add_f32 v{regs[i]}, v{regs[i]}, v{regs[i+n]}")
    return regs[:n]

def flag_store(val):
    e(f"v_mov_b32 v4, {val}")
    e("v_mov_b32 v5, s30")
    e("global_store_byte v5, v4, s[40:41] sc1")

def poll(k, nlanes_dw, base_s, lbl):
    e(f"v_lshlrev_b32 v6, 2, v1")
    e(f"v_add_u32 v6, s{base_s}, v6")
    e("s_mov_b32 s63, 0x40000")
    if nlanes_dw < 64:
        e("s_mov_b64 exec, s[42:43]")
    e(f"{lbl}:")
    e("global_load_dword v7, v6, s[40:41] sc1")
    e("s_sub_u32 s63, s63, 1")
    e("s_cmp_eq_u32 s63, 0")
    e(f"s_cbranch_scc1 {lbl}_X")
    e("s_waitcnt vmcnt(0)")
    e("v_or_b32 v7, 0x80808080, v7")
    e(f"v_subrev_u32 v7, {k*0x01010101}, v7")
    e("v_and_b32 v7, 0x80808080, v7")
    e("v_cmp_ne_u32 vcc, 0x80808080, v7")
    e("s_nop 1")
    e(f"s_cbranch_vccnz {lbl}")
    e(f"{lbl}_X:")
    e("s_waitcnt vmcnt(0)")
    e("s_mov_b64 exec, -1")

e(f".globl {KNAME}")
e(".p2align 8")
e(f".type {KNAME},@function")
e(f"{KNAME}:")
stamp()
e("s_cmp_ge_u32 s2, 256")
e("s_cbranch_scc1 L_END")
e("s_load_dwordx16 s[44:59], s[0:1], 0     ; x,k,v,wq,wo,bx,w1,b1")
e("s_load_dwordx8 s[32:39], s[0:1], 64      ; w2,b2,out,dbg")
e(f"s_load_dwordx2 s[60:61], s[0:1], {KA_WS}")
e("v_and_b32 v1, 63, v0           ; lane")
e("v_lshrrev_b32 v2, 6, v0        ; wave")
e("s_and_b32 s28, s2, 7           ; g")
e("s_lshr_b32 s29, s2, 3          ; j")
e("s_lshl_b32 s30, s28, 5")
e("s_add_u32 s30, s30, s29")
e("v_readfirstlane_b32 s31, v2")
e("s_waitcnt lgkmcnt(0)")
e("s_mov_b32 s40, s38")
e("s_mov_b32 s41, s39             ; dbg ptr s[40:41]")
srd(20, 60, WS_BYTES)
e("s_cmp_eq_u32 s31, 8")
e("s_cbranch_scc1 L_COMM")

srd(4, 44, 1024)
srd(8, 50, 512*4096*2)
e("s_lshl_b32 s24, s28, 24")
e("s_lshl_b32 s25, s29, 15")
e("s_add_u32 s24, s24, s25")
e(f"s_add_u32 s24, s24, {61440*256}")
e("s_add_u32 s12, s46, s24")
e("s_addc_u32 s13, s47, 0")
e("s_mov_b32 s14, 32768")
e("s_mov_b32 s15, 0x00020000")
e("s_add_u32 s16, s48, s24")
e("s_addc_u32 s17, s49, 0")
e("s_mov_b32 s18, 32768")
e("s_mov_b32 s19, 0x00020000")
e("v_lshlrev_b32 v3, 4, v1")
e("buffer_load_dwordx4 v[8:11], v3, s[4:7], 0 offen")
e("s_lshl_b32 s24, s28, 10")
e("s_lshl_b32 s25, s29, 5")
e("s_add_u32 s24, s24, s25")
e("v_lshrrev_b32 v4, 1, v1")
e("v_lshl_add_u32 v4, v2, 6, v4   ; row")
e("v_lshlrev_b32 v5, 13, v4")
e("v_and_b32 v6, 1, v1")
e("v_lshl_add_u32 v5, v6, 4, v5")
e("v_add_u32 v5, s24, v5")
e("buffer_load_dwordx4 v[12:15], v5, s[8:11], 0 offen" + NT)
e("v_add_u32 v5, 0x40000, v5")
e("buffer_load_dwordx4 v[16:19], v5, s[8:11], 0 offen" + NT)
e("v_and_b32 v6, 15, v1           ; l&15")
e("v_lshrrev_b32 v7, 4, v1        ; l>>4")
e("v_lshl_add_u32 v5, v2, 4, v6")
e("v_lshlrev_b32 v5, 8, v5")
e("v_lshl_add_u32 v5, v7, 4, v5")
for jj in range(4):
    e(f"buffer_load_dwordx4 v[{32+4*jj}:{35+4*jj}], v5, s[12:15], 0 offen offset:{64*jj}" + NT)
e("v_lshlrev_b32 v5, 4, v2")
e("v_lshl_add_u32 v5, v7, 2, v5")
e("v_lshlrev_b32 v5, 8, v5")
e("v_lshl_add_u32 v5, v6, 4, v5")
for r in range(4):
    e(f"buffer_load_dwordx4 v[{48+4*r}:{51+4*r}], v5, s[16:19], 0 offen offset:{256*r}" + NT)
srd(8, 52, 4096*512*2)
e("s_lshr_b32 s26, s29, 3")
e("s_lshl_b32 s27, s28, 2")
e("s_add_u32 s26, s26, s27        ; head h")
e("s_and_b32 s27, s29, 7          ; cb")
e("s_lshl_b32 s24, s26, 17")
e("s_lshl_b32 s25, s27, 7")
e("s_add_u32 s24, s24, s25")
e("v_lshrrev_b32 v5, 2, v0")
e("v_lshlrev_b32 v5, 10, v5")
e("v_and_b32 v3, 3, v0")
e("v_lshl_add_u32 v5, v3, 5, v5")
e("v_add_u32 v5, s24, v5")
e("buffer_load_dwordx4 v[64:67], v5, s[8:11], 0 offen" + NT)
e("buffer_load_dwordx4 v[68:71], v5, s[8:11], 0 offen offset:16" + NT)
e("s_mul_i32 s24, s28, 7")
e("s_lshr_b32 s25, s29, 2")
e("s_add_u32 s24, s24, s25")
e("s_lshl_b32 s24, s24, 5")
e("s_and_b32 s25, s29, 3")
e("s_lshl_b32 s25, s25, 3")
e("s_add_u32 s24, s24, s25")
e("s_cmp_lt_u32 s29, 28")
e("s_cselect_b32 s62, s24, 0      ; f0")
srd(8, 56, 512*1792*2)
e("s_lshl_b32 s24, s62, 1")
e("s_movk_i32 s25, 3584")
e("v_mul_lo_u32 v5, v0, s25")
e("v_add_u32 v5, s24, v5")
e("buffer_load_dwordx4 v[72:75], v5, s[8:11], 0 offen" + NT)
srd(12, 32, 1792*512*2)
e("s_lshl_b32 s25, s62, 10")
e("v_lshlrev_b32 v5, 10, v2")
e("v_lshl_add_u32 v5, v1, 4, v5")
e("v_add_u32 v5, s25, v5")
e("buffer_load_dwordx4 v[76:79], v5, s[12:15], 0 offen" + NT)
srd(16, 58, 1792*2)
e("v_and_b32 v5, 7, v0")
e("v_lshlrev_b32 v5, 1, v5")
e("v_add_u32 v5, s24, v5")
e("buffer_load_ushort v80, v5, s[16:19], 0 offen")
stamp()
e("s_waitcnt vmcnt(15)")
stamp()
for i in range(4):
    unpack(20+2*i, 8+i)
layernorm8(20, 28, 24)
e("v_lshlrev_b32 v81, 11, v2")
e("v_lshl_add_u32 v5, v1, 5, v81")
e("ds_write_b128 v5, v[20:23]")
e("ds_write_b128 v5, v[24:27] offset:16")
e("v_lshl_add_u32 v5, v4, 2, v81  ; ln[row]")
e("s_waitcnt lgkmcnt(0)")
e("ds_read_b32 v20, v5")
e("ds_read_b32 v21, v5 offset:128")
e("s_waitcnt lgkmcnt(0) vmcnt(13)")
stamp()
for k in range(4):
    unpack(30, 12+k)
    e(f"v_mul_f32 v{22+2*k}, v20, v30")
    e(f"v_mul_f32 v{23+2*k}, v20, v31")
for k in range(4):
    unpack(30, 16+k)
    e(f"v_fmac_f32 v{22+2*k}, v21, v30")
    e(f"v_fmac_f32 v{23+2*k}, v21, v31")
r4 = rs32(list(range(22, 30)))
r2 = rs16(r4)
for sh in (2, 4, 8):
    e("s_nop 1")
    for r in r2:
        e(f"v_add_f32_dpp v{r}, v{r}, v{r} row_shr:{sh} row_mask:0xf bank_mask:0xf bound_ctrl:0")
e("v_lshrrev_b32 v5, 5, v1")
e("v_lshlrev_b32 v5, 4, v5")
e("v_and_b32 v3, 1, v7")
e("v_lshl_add_u32 v5, v3, 3, v5")
e("v_and_b32 v3, 1, v1")
e("v_lshl_add_u32 v5, v3, 5, v5")
e("v_lshl_add_u32 v5, v2, 6, v5   ; + w*64")
e("v_cmp_le_u32 vcc, 14, v6")
e("s_and_saveexec_b64 s[24:25], vcc")
e(f"ds_write_b64 v5, v[{r2[0]}:{r2[1]}] offset:{LD_QP}")
e("s_mov_b64 exec, s[24:25]")
e("s_waitcnt lgkmcnt(0)")
e("s_barrier                      ; B1")
e("s_barrier")
stamp()
e("v_and_b32 v3, 3, v1")
e("v_lshlrev_b32 v5, 8, v3")
e("v_lshl_add_u32 v5, v7, 4, v5")
for jj in range(4):
    e(f"ds_read_b128 v[{8+4*jj}:{11+4*jj}], v5 offset:{LD_Q+64*jj}")
e("s_waitcnt lgkmcnt(0) vmcnt(9)")
stamp()
for jj in range(4):
    c = "0" if jj == 0 else "v[24:27]"
    e(f"v_mfma_f32_16x16x32_bf16 v[24:27], v[{32+4*jj}:{35+4*jj}], v[{8+4*jj}:{11+4*jj}], {c}")
e("v_mov_b32 v28, 0x3db504f3")
e("s_nop 7")
for i in range(4):
    bf16r(24+i, 24+i)
    e(f"v_mul_f32 v{24+i}, v{24+i}, v28")
    bf16r(24+i, 24+i)
e("v_max_f32 v30, v24, v25")
e("v_max3_f32 v30, v30, v26, v27")
e("v_mov_b32 v31, v30")
e("s_nop 1")
e("v_permlane16_swap_b32 v30, v31")
e("s_nop 1")
e("v_max_f32 v30, v30, v31")
e("v_mov_b32 v31, v30")
e("s_nop 1")
e("v_permlane32_swap_b32 v30, v31")
e("s_nop 1")
e("v_max_f32 v30, v30, v31")
for i in range(4):
    e(f"v_sub_f32 v{24+i}, v{24+i}, v30")
    e(f"v_mul_f32 v{24+i}, 0x3fb8aa3b, v{24+i}")
    e(f"v_exp_f32 v{24+i}, v{24+i}")
e("s_nop 0")
e("v_add_f32 v31, v24, v25")
e("v_add_f32 v28, v26, v27")
e("v_add_f32 v31, v31, v28")
e("v_mov_b32 v28, v31")
e("s_nop 1")
e("v_permlane16_swap_b32 v31, v28")
e("s_nop 1")
e("v_add_f32 v31, v31, v28")
e("v_mov_b32 v28, v31")
e("s_nop 1")
e("v_permlane32_swap_b32 v31, v28")
e("s_nop 1")
e("v_add_f32 v31, v31, v28         ; l_w")
e("v_lshlrev_b32 v5, 5, v2")
e("v_lshl_add_u32 v5, v3, 3, v5")
e(f"ds_write_b64 v5, v[30:31] offset:{LD_ML}")
for k in range(32):
    e(f"v_mov_b32 v{84+k}, 0")
for r in range(4):
    e(f"s_waitcnt vmcnt({8-r})")
    for k in range(4):
        unpack(8+2*k, 48+4*r+k)
    for h in range(4):
        e(f"v_mov_b32_dpp v{16+2*h}, v{24+r} quad_perm:[{h},{h},{h},{h}] row_mask:0xf bank_mask:0xf")
    for h in range(4):
        for k in range(4):
            a = 84+8*h+2*k
            e(f"v_pk_fma_f32 v[{a}:{a+1}], v[{8+2*k}:{9+2*k}], v[{16+2*h}:{17+2*h}], v[{a}:{a+1}] op_sel_hi:[1,0,1]")
stamp()
ra = rs32(list(range(84, 116)))
rb = rs16(ra)
e("v_lshl_add_u32 v5, v1, 5, v81")
e(f"ds_write_b128 v5, v[84:87] offset:{LD_O}")
e(f"ds_write_b128 v5, v[88:91] offset:{LD_O+16}")
e("s_waitcnt lgkmcnt(0)")
e("s_barrier                      ; B3")
e("v_lshrrev_b32 v3, 7, v0")
e("v_lshlrev_b32 v5, 3, v3")
for w in range(8):
    e(f"ds_read_b64 v[{8+2*w}:{9+2*w}], v5 offset:{LD_ML+32*w}")
e("v_lshlrev_b32 v5, 2, v0")
for w in range(8):
    e(f"ds_read_b32 v{24+w}, v5 offset:{LD_O+2048*w}")
e("s_waitcnt lgkmcnt(8)")
e("v_max3_f32 v32, v8, v10, v12")
e("v_max3_f32 v33, v14, v16, v18")
e("v_max3_f32 v32, v32, v20, v22")
e("v_max_f32 v32, v32, v33         ; M")
for w in range(8):
    e(f"v_sub_f32 v{8+2*w}, v{8+2*w}, v32")
    e(f"v_mul_f32 v{8+2*w}, 0x3fb8aa3b, v{8+2*w}")
    e(f"v_exp_f32 v{8+2*w}, v{8+2*w}")
e("s_waitcnt lgkmcnt(0)")
e("v_mul_f32 v34, v8, v24")
e("v_mul_f32 v33, v8, v9")
for w in range(1, 8):
    e(f"v_fmac_f32 v34, v{8+2*w}, v{24+w}")
    e(f"v_fmac_f32 v33, v{8+2*w}, v{9+2*w}")
e("s_lshl_b32 s24, s30, 11")
e(f"s_add_u32 s24, s24, {WS_OP}")
e("v_add_u32 v5, s24, v5")
e("buffer_store_dword v34, v5, s[20:23], 0 offen sc1")
e("v_and_b32 v4, 127, v0")
e("v_cmp_eq_u32 vcc, 0, v4")
e("s_and_saveexec_b64 s[24:25], vcc")
e("s_lshl_b32 s26, s30, 5")
e(f"s_add_u32 s26, s26, {WS_ML}")
e("v_lshlrev_b32 v5, 3, v3")
e("v_add_u32 v5, s26, v5")
e("buffer_store_dwordx2 v[32:33], v5, s[20:23], 0 offen sc1")
e("s_mov_b64 exec, s[24:25]")
e("s_waitcnt vmcnt(0)")
stamp()
e("s_barrier")
e("s_barrier")
stamp()
e("s_lshr_b32 s26, s29, 3         ; h&3")
e("s_lshl_b32 s24, s28, 10")
e("s_lshl_b32 s25, s26, 3")
e("s_add_u32 s24, s24, s25")
e(f"s_add_u32 s24, s24, {WS_ML}")
e("v_and_b32 v4, 31, v1")
e("v_lshlrev_b32 v5, 5, v4")
e("v_add_u32 v5, s24, v5")
e("buffer_load_dwordx2 v[8:9], v5, s[20:23], 0 offen sc1")
e("s_lshl_b32 s24, s28, 16")
e("s_lshl_b32 s25, s26, 9")
e("s_add_u32 s24, s24, s25")
e(f"s_add_u32 s24, s24, {WS_OP}")
e("v_and_b32 v3, 31, v0")
e("v_lshrrev_b32 v10, 5, v0       ; cg")
e("v_lshlrev_b32 v5, 12, v10")
e("v_lshl_add_u32 v5, v3, 4, v5")
e("v_add_u32 v5, s24, v5")
e("buffer_load_dwordx4 v[12:15], v5, s[20:23], 0 offen sc1")
e("buffer_load_dwordx4 v[16:19], v5, s[20:23], 0 offen offset:2048 sc1")
e("s_waitcnt vmcnt(2)")
e("v_mov_b32 v20, v8")
for sh in (1, 2, 4, 8):
    e("s_nop 1")
    e(f"v_max_f32_dpp v20, v20, v20 row_shr:{sh} row_mask:0xf bank_mask:0xf")
e("s_nop 1")
e("v_readlane_b32 s24, v20, 15")
e("v_readlane_b32 s25, v20, 31")
e("s_nop 1")
e("v_mov_b32 v20, s24")
e("v_max_f32 v20, s25, v20")
e("v_sub_f32 v21, v8, v20")
e("v_mul_f32 v21, 0x3fb8aa3b, v21")
e("v_exp_f32 v21, v21")
e("s_nop 0")
e("v_mul_f32 v22, v21, v9")
for sh in (1, 2, 4, 8):
    e("s_nop 1")
    e(f"v_add_f32_dpp v22, v22, v22 row_shr:{sh} row_mask:0xf bank_mask:0xf bound_ctrl:0")
e("s_nop 1")
e("v_readlane_b32 s24, v22, 15")
e("v_readlane_b32 s25, v22, 31")
e("s_nop 1")
e("v_mov_b32 v22, s24")
e("v_add_f32 v22, s25, v22")
e("v_rcp_f32 v22, v22")
e("s_nop 0")
e("v_mul_f32 v21, v21, v22")
e("v_lshlrev_b32 v23, 3, v10")
e("v_and_b32 v23, 127, v23")
e("ds_bpermute_b32 v24, v23, v21")
e("v_add_u32 v23, 4, v23")
e("ds_bpermute_b32 v25, v23, v21")
e("s_waitcnt lgkmcnt(0) vmcnt(0)")
for k in range(4):
    e(f"v_mul_f32 v{12+k}, v24, v{12+k}")
    e(f"v_fmac_f32 v{12+k}, v25, v{16+k}")
for k in range(4):
    e(f"v_mov_b32 v{16+k}, v{12+k}")
e("s_nop 1")
for k in range(4):
    e(f"v_permlane32_swap_b32 v{12+k}, v{16+k}")
e("s_nop 1")
for k in range(4):
    e(f"v_add_f32 v{12+k}, v{12+k}, v{16+k}")
e("v_lshlrev_b32 v5, 9, v2")
e("v_lshl_add_u32 v5, v3, 4, v5")
e(f"ds_write_b128 v5, v[12:15] offset:{LD_O}")
e("s_waitcnt lgkmcnt(0)")
e("s_barrier                      ; B6")
e("v_lshrrev_b32 v4, 2, v0")
e("v_lshlrev_b32 v5, 2, v4")
for w in range(8):
    e(f"ds_read_b32 v{8+w}, v5 offset:{LD_O+512*w}")
e("s_waitcnt lgkmcnt(0)")
e("v_add_f32 v8, v8, v9")
e("v_add_f32 v10, v10, v11")
e("v_add_f32 v12, v12, v13")
e("v_add_f32 v14, v14, v15")
e("v_add_f32 v8, v8, v10")
e("v_add_f32 v12, v12, v14")
e("v_add_f32 v8, v8, v12")
bf16r(8, 8)
for k in range(8):
    unpack(16+2*k, 64+k)
for k in range(16):
    e(f"v_mul_f32 v{16+k}, v8, v{16+k}")
r8 = rs32(list(range(16, 32)))
r4 = rs16(r8)
for sh in (4, 8):
    e("s_nop 1")
    for r in r4:
        e(f"v_add_f32_dpp v{r}, v{r}, v{r} row_shr:{sh} row_mask:0xf bank_mask:0xf bound_ctrl:0")
e("v_and_b32 v3, 3, v1")
e("v_lshlrev_b32 v5, 6, v3")
e("v_lshrrev_b32 v4, 5, v1")
e("v_lshl_add_u32 v5, v4, 5, v5")
e("v_and_b32 v4, 1, v7")
e("v_lshl_add_u32 v5, v4, 4, v5")
e("v_lshl_add_u32 v5, v2, 8, v5")
e("v_cmp_le_u32 vcc, 12, v6")
e("s_and_saveexec_b64 s[24:25], vcc")
e(f"ds_write_b128 v5, v[{r4[0]}:{r4[3]}] offset:{LD_LN}")
e("s_mov_b64 exec, s[24:25]")
e("s_waitcnt lgkmcnt(0)")
e("s_barrier                      ; B7")
e("s_cmp_lg_u32 s31, 0")
e("s_cbranch_scc1 L_O_SKIP")
e("v_lshlrev_b32 v5, 2, v1")
for w in range(8):
    e(f"ds_read_b32 v{8+w}, v5 offset:{LD_LN+256*w}")
e("s_waitcnt lgkmcnt(0)")
for w in range(1, 8):
    e(f"v_add_f32 v8, v8, v{8+w}")
e("s_lshl_b32 s24, s28, 2")
e("s_add_u32 s24, s24, s26        ; head")
e("s_lshl_b32 s24, s24, 11")
e("s_lshl_b32 s25, s27, 8")
e("s_add_u32 s24, s24, s25")
e(f"s_add_u32 s24, s24, {WS_AP}")
e("v_add_u32 v5, s24, v5")
e("buffer_store_dword v8, v5, s[20:23], 0 offen sc1")
e("s_waitcnt vmcnt(0)")
e("L_O_SKIP:")
stamp()
e("s_barrier                      ; B8 -> flag 3")
e("s_barrier")
stamp()
e("v_and_b32 v3, 127, v0")
e("v_lshrrev_b32 v4, 7, v0        ; part")
e("v_lshlrev_b32 v5, 14, v4")
e("v_lshl_add_u32 v5, v3, 4, v5")
e(f"v_add_u32 v5, {WS_AP}, v5")
for i in range(8):
    e(f"buffer_load_dwordx4 v[{8+4*i}:{11+4*i}], v5, s[20:23], 0 offen offset:{(i&1)*2048} sc1")
    if i & 1 and i < 7:
        e("v_add_u32 v5, 0x1000, v5")
e("v_lshlrev_b32 v5, 4, v1")
e("buffer_load_dwordx4 v[40:43], v5, s[4:7], 0 offen   ; x cols 8l..8l+7")
e("s_waitcnt vmcnt(1)")
for i in range(1, 8):
    for k in range(4):
        e(f"v_add_f32 v{8+k}, v{8+k}, v{8+4*i+k}")
e("v_lshlrev_b32 v5, 4, v0")
e(f"ds_write_b128 v5, v[8:11] offset:{LD_O}")
e("s_waitcnt lgkmcnt(0)")
e("s_barrier                      ; B10")
e("v_lshlrev_b32 v5, 5, v1")
for p in range(4):
    e(f"ds_read_b128 v[{8+8*p}:{11+8*p}], v5 offset:{LD_O+2048*p}")
    e(f"ds_read_b128 v[{12+8*p}:{15+8*p}], v5 offset:{LD_O+2048*p+16}")
e("s_waitcnt lgkmcnt(0) vmcnt(0)")
for k in range(4):
    unpack(44+2*k, 40+k)
for k in range(8):
    e(f"v_add_f32 v{8+k}, v{8+k}, v{16+k}")
    e(f"v_add_f32 v{24+k}, v{24+k}, v{32+k}")
    e(f"v_add_f32 v{8+k}, v{8+k}, v{24+k}")
    bf16r(8+k, 8+k)
    e(f"v_add_f32 v{8+k}, v{8+k}, v{44+k}")
    bf16r(8+k, 8+k)
    e(f"v_mov_b32 v{84+k}, v{8+k}     ; keep h")
layernorm8(8, 16, 24)
e("v_lshl_add_u32 v5, v1, 5, v81")
e("ds_write_b128 v5, v[8:11]")
e("ds_write_b128 v5, v[12:15] offset:16")
e("v_lshl_add_u32 v5, v0, 2, v81   ; ln2[t] (t = w*64+l)")
e("s_waitcnt lgkmcnt(0)")
e("ds_read_b32 v16, v5")
for k in range(4):
    unpack(20+2*k, 72+k)
e("s_waitcnt lgkmcnt(0)")
for k in range(8):
    e(f"v_mul_f32 v{20+k}, v16, v{20+k}")
q4 = rs32(list(range(20, 28)))
q2 = rs16(q4)
for sh in (1, 2, 4, 8):
    e("s_nop 1")
    for r in q2:
        e(f"v_add_f32_dpp v{r}, v{r}, v{r} row_shr:{sh} row_mask:0xf bank_mask:0xf bound_ctrl:0")
e("v_lshrrev_b32 v4, 5, v1")
e("v_lshlrev_b32 v5, 4, v4")
e("v_and_b32 v4, 1, v7")
e("v_lshl_add_u32 v5, v4, 3, v5")
e("v_lshl_add_u32 v5, v2, 5, v5")
e("v_cmp_eq_u32 vcc, 15, v6")
e("s_and_saveexec_b64 s[24:25], vcc")
e(f"ds_write_b64 v5, v[{q2[0]}:{q2[1]}] offset:{LD_MISC}")
e("s_mov_b64 exec, s[24:25]")
e("s_waitcnt lgkmcnt(0)")
e("s_barrier                      ; B11")
e("v_and_b32 v4, 7, v0")
e("v_lshlrev_b32 v5, 2, v4")
for w in range(8):
    e(f"ds_read_b32 v{8+w}, v5 offset:{LD_MISC+32*w}")
e("s_waitcnt lgkmcnt(0)")
e("v_add_f32 v8, v8, v9")
e("v_add_f32 v10, v10, v11")
e("v_add_f32 v12, v12, v13")
e("v_add_f32 v14, v14, v15")
e("v_add_f32 v8, v8, v10")
e("v_add_f32 v12, v12, v14")
e("v_add_f32 v8, v8, v12")
bf16r(8, 8)
e("v_lshlrev_b32 v80, 16, v80")
e("v_add_f32 v8, v8, v80")
bf16r(8, 8)
e("v_mul_f32 v9, v8, v8")
e("v_mul_f32 v9, v9, v8")
e("v_mov_b32 v10, 0x3d372713")
e("v_fma_f32 v9, v9, v10, v8")
e("v_mul_f32 v9, 0x3f4c422a, v9")
e("v_mul_f32 v9, 0x4038aa3b, v9")
e("v_exp_f32 v9, v9")
e("s_nop 0")
e("v_add_f32 v9, 1.0, v9")
e("v_rcp_f32 v9, v9")
e("s_nop 0")
e("v_fma_f32 v9, v9, -2.0, 2.0")
e("v_mul_f32 v9, v9, v8")
e("v_mul_f32 v9, 0.5, v9")
bf16r(9, 9)
e("s_nop 0")
e("v_readlane_b32 s24, v9, s31     ; g[w]")
for k in range(4):
    unpack(16+2*k, 76+k)
e("s_nop 1")
for k in range(8):
    e(f"v_mul_f32 v{16+k}, s24, v{16+k}")
e("v_lshl_add_u32 v5, v1, 5, v81")
e(f"ds_write_b128 v5, v[16:19] offset:{LD_O}")
e(f"ds_write_b128 v5, v[20:23] offset:{LD_O+16}")
e("s_waitcnt lgkmcnt(0)")
e("s_barrier                      ; B12")
e("v_lshlrev_b32 v5, 2, v0")
for w in range(8):
    e(f"ds_read_b32 v{8+w}, v5 offset:{LD_O+2048*w}")
e("s_waitcnt lgkmcnt(0)")
e("v_add_f32 v8, v8, v9")
e("v_add_f32 v10, v10, v11")
e("v_add_f32 v12, v12, v13")
e("v_add_f32 v14, v14, v15")
e("v_add_f32 v8, v8, v10")
e("v_add_f32 v12, v12, v14")
e("v_add_f32 v8, v8, v12")
e("s_cmp_ge_u32 s29, 28")
e("s_cbranch_scc1 L_M_SKIP")
e("s_mul_i32 s24, s28, 28")
e("s_add_u32 s24, s24, s29")
e("s_lshl_b32 s24, s24, 11")
e(f"s_add_u32 s24, s24, {WS_MP}")
e("v_add_u32 v5, s24, v5")
e("buffer_store_dword v8, v5, s[20:23], 0 offen sc1")
e("s_waitcnt vmcnt(0)")
e("L_M_SKIP:")
stamp()
e("s_barrier                      ; B13 -> flag 4")
e("s_cmp_ge_u32 s2, 128")
e("s_cbranch_scc1 L_FIN")
e("s_barrier")
stamp()
e("s_cmp_ge_u32 s31, 4")
e("s_cbranch_scc1 L_F_NOLOAD")
e("v_mov_b32 v8, 0")
e("v_mov_b32 v9, 0")
e("v_mov_b32 v10, 0")
e("v_mov_b32 v11, 0")
e("s_lshl_b32 s24, s2, 4")
e(f"s_add_u32 s24, s24, {WS_MP}")
e("v_lshlrev_b32 v5, 11, v0")
e("v_add_u32 v5, s24, v5")
e("v_cmp_gt_u32 vcc, 224, v0")
e("s_and_saveexec_b64 s[24:25], vcc")
e("buffer_load_dwordx4 v[8:11], v5, s[20:23], 0 offen sc1")
e("s_mov_b64 exec, s[24:25]")
e("s_waitcnt vmcnt(0)")
f2 = rs32([8, 9, 10, 11])
f1 = rs16(f2)
for sh in (1, 2, 4, 8):
    e("s_nop 1")
    e(f"v_add_f32_dpp v8, v8, v8 row_shr:{sh} row_mask:0xf bank_mask:0xf bound_ctrl:0")
e("v_lshrrev_b32 v4, 5, v1")
e("v_lshlrev_b32 v5, 3, v4")
e("v_and_b32 v4, 1, v7")
e("v_lshl_add_u32 v5, v4, 2, v5")
e("v_lshl_add_u32 v5, v2, 4, v5")
e("v_cmp_eq_u32 vcc, 15, v6")
e("s_and_saveexec_b64 s[24:25], vcc")
e(f"ds_write_b32 v5, v8 offset:{LD_MISC+512}")
e("s_mov_b64 exec, s[24:25]")
e("L_F_NOLOAD:")
e("s_cmp_lg_u32 s31, 0")
e("s_cbranch_scc1 L_F_NOH")
e("v_lshlrev_b32 v5, 5, v1")
e(f"ds_write_b128 v5, v[84:87] offset:{LD_LN}")
e(f"ds_write_b128 v5, v[88:91] offset:{LD_LN+16}")
e("L_F_NOH:")
e("s_waitcnt lgkmcnt(0)")
e("s_barrier                      ; B15")
e("s_cmp_lg_u32 s31, 0")
e("s_cbranch_scc1 L_FIN")
e("v_cmp_gt_u32 vcc, 4, v0")
e("s_and_saveexec_b64 s[24:25], vcc")
e("s_cbranch_execz L_FIN")
srd(8, 34, 1024)
srd(12, 36, 1024)
e("s_lshl_b32 s26, s2, 2")
e("v_add_u32 v4, s26, v0           ; col")
e("v_lshlrev_b32 v3, 1, v4")
e("buffer_load_ushort v20, v3, s[8:11], 0 offen")
e("v_lshlrev_b32 v5, 2, v0")
for w in range(4):
    e(f"ds_read_b32 v{8+w}, v5 offset:{LD_MISC+512+16*w}")
e("v_lshlrev_b32 v5, 2, v4")
e(f"ds_read_b32 v12, v5 offset:{LD_LN}")
e("s_waitcnt lgkmcnt(0) vmcnt(0)")
e("v_add_f32 v8, v8, v9")
e("v_add_f32 v10, v10, v11")
e("v_add_f32 v8, v8, v10")
bf16r(8, 8)
e("v_lshlrev_b32 v20, 16, v20")
e("v_add_f32 v8, v8, v20")
bf16r(8, 8)
e("v_add_f32 v8, v8, v12")
e("v_cvt_pk_bf16_f32 v8, v8, v8")
e("buffer_store_short v8, v3, s[12:15], 0 offen")
e("L_FIN:")
stamp()
if DBGST:
    n = nstamp[0]
    e("s_mov_b64 exec, -1")
    e("s_cmp_lg_u32 s31, 0")
    e("s_cbranch_scc1 L_END")
    e("s_cmp_lg_u32 s2, 0")
    e("s_cbranch_scc1 L_END")
    e("s_waitcnt lgkmcnt(0)")
    e("L_DLY:")
    e("s_memrealtime s[24:25]")
    e("s_waitcnt lgkmcnt(0)")
    e("s_sub_u32 s24, s24, s64")
    e("s_cmp_lt_u32 s24, 6000")
    e("s_cbranch_scc1 L_DLY")
    e("v_mov_b32 v1, 0")
    for i in range(n):
        e(f"s_sub_u32 s24, s{64+2*i}, s64")
        e(f"v_mov_b32 v2, s24")
        e(f"global_store_dword v1, v2, s[40:41] offset:{4*i} sc1")
        e("s_nop 1")
elif STAMP:
    n = nstamp[0]
    e("s_mov_b64 exec, -1")
    e("s_cmp_lg_u32 s31, 0")
    e("s_cbranch_scc1 L_END")
    e("v_cmp_eq_u32 vcc, 0, v0")
    e("s_and_saveexec_b64 s[24:25], vcc")
    e("s_mul_i32 s24, s2, 160")
    e(f"s_add_u32 s24, s24, {WS_ST}")
    e("v_mov_b32 v1, s24")
    e("s_waitcnt lgkmcnt(0)")
    for i in range(n):
        e(f"v_mov_b32 v2, s{64+2*i}")
        e(f"v_mov_b32 v3, s{65+2*i}")
        e(f"buffer_store_dwordx2 v[2:3], v1, s[20:23], 0 offen offset:{8*i}")
        e("s_nop 1")
e("s_endpgm")

e("L_COMM:")
e("v_cmp_gt_u32 s[42:43], 8, v1")
e("s_barrier                      ; B1")
e("v_and_b32 v3, 15, v1")
e("v_lshlrev_b32 v5, 2, v3")
for w in range(8):
    e(f"ds_read_b32 v{8+w}, v5 offset:{LD_QP+64*w}")
e("s_waitcnt lgkmcnt(0)")
for w in range(1, 8):
    e(f"v_add_f32 v8, v8, v{8+w}")
e("v_cvt_pk_bf16_f32 v8, v8, v8")
e("s_lshl_b32 s24, s30, 5          ; (g*512 + j*16)*2")
e("v_lshlrev_b32 v5, 1, v3")
e("v_add_u32 v5, s24, v5")
e(f"v_cmp_gt_u32 vcc, 16, v1")
e("s_and_saveexec_b64 s[24:25], vcc")
e("buffer_store_short v8, v5, s[20:23], 0 offen sc1")
e("s_mov_b64 exec, s[24:25]")
e("s_waitcnt vmcnt(0)")
flag_store(1)
e("s_lshl_b32 s24, s28, 5")
poll(1, 8, 24, "L_P1")
e("s_lshl_b32 s24, s28, 10")
e("v_lshlrev_b32 v5, 4, v1")
e("v_add_u32 v6, s24, v5")
e("buffer_load_dwordx4 v[8:11], v6, s[20:23], 0 offen sc1")
e("s_waitcnt vmcnt(0)")
e(f"ds_write_b128 v5, v[8:11] offset:{LD_Q}")
e("s_waitcnt lgkmcnt(0)")
e("s_barrier                      ; B2")
e("s_barrier                      ; B3")
e("s_barrier                      ; B4")
flag_store(2)
e("s_lshl_b32 s24, s28, 5")
poll(2, 8, 24, "L_P2")
e("s_barrier                      ; B5")
e("s_barrier                      ; B6")
e("s_barrier                      ; B7")
e("s_barrier                      ; B8")
flag_store(3)
e("s_mov_b32 s24, 0")
poll(3, 64, 24, "L_P3")
e("s_barrier                      ; B9")
e("s_barrier                      ; B10")
e("s_barrier                      ; B11")
e("s_barrier                      ; B12")
e("s_barrier                      ; B13")
flag_store(4)
e("s_cmp_ge_u32 s2, 128")
e("s_cbranch_scc1 L_END")
e("s_mov_b32 s24, 0")
poll(4, 64, 24, "L_P4")
e("s_barrier                      ; B14")
e("s_barrier                      ; B15")
e("L_END:")
e("s_endpgm")

for _l in L:
    _m = re.search(r"buffer_\w+.*offset:(\d+)", _l)
    assert not _m or int(_m.group(1)) < 4096, _l
hdr = [f"; @launch grid=(256,1,1) block=(576,1,1) lds={LD_TOTAL}",
       '.amdgcn_target "amdgcn-amd-amdhsa--gfx950"', ".text"]
tail = ['.section .rodata,"a"', ".p2align 6", f".amdhsa_kernel {KNAME}",
        "  .amdhsa_next_free_vgpr 120", "  .amdhsa_next_free_sgpr 100",
        "  .amdhsa_accum_offset 120", "  .amdhsa_group_segment_fixed_size 0",
        "  .amdhsa_kernarg_size 104", "  .amdhsa_user_sgpr_count 2",
        "  .amdhsa_user_sgpr_kernarg_segment_ptr 1", "  .amdhsa_system_sgpr_workgroup_id_x 1",
        "  .amdhsa_float_denorm_mode_32 3", ".end_amdhsa_kernel"]
open(OUT, "w").write("\n".join(hdr + L + tail) + "\n")
print("wrote", OUT, len(L), "lines; stamps", nstamp[0])
```

```python
import sys, re
OUT = sys.argv[1] if len(sys.argv) > 1 else "sequential_preLN__sliding_block_cached__dense_activation_gelu__decode.s"
STAMP = len(sys.argv) > 2 and sys.argv[2] in ("stamp","dbg")
DBGST = len(sys.argv) > 2 and sys.argv[2] == "dbg"
NT = " nt" if "nt" in sys.argv[3:] else ""
SLP = [int(a[3:]) for a in sys.argv[3:] if a.startswith("slp")]
SLP = SLP[0] if SLP else 0
PRE = [int(a[3:]) for a in sys.argv[3:] if a.startswith("pre")]
PRE = PRE[0] if PRE else 0
KNAME = "sequential_preLN__sliding_block_cached__dense_activation_gelu__decode_kernel"
KA_X, KA_K, KA_V, KA_WQ, KA_WO, KA_BX, KA_W1, KA_B1, KA_W2, KA_B2, KA_OUT, KA_DBG, KA_WS = [8*i for i in range(13)]
WS_Q = 0
WS_OP = 0x10000
WS_ML = 0x90000
WS_AP = 0xA0000
WS_MP = 0xC0000
WS_H = 0x140000
WS_ST = 0x160000
WS_BYTES = 0x180000
LD_LN = 0
LD_QP = 16384
LD_Q = 17408
LD_ML = 18432
LD_MISC = 19456
LD_O = 20480
LD_TOTAL = 20480 + 16384

L = []
def e(s=""):
    L.append("    " + s if not s.endswith(":") else s)
nstamp = [0]
stbase = [0]
def stamp():
    if STAMP:
        i = nstamp[0]; nstamp[0] += 1
        e(f"s_memrealtime s[{64+2*i}:{65+2*i}]")
def stamp_out(lbl):
    if not STAMP: return
    n = nstamp[0]
    e("s_mov_b64 exec, -1")
    e("v_cmp_eq_u32 vcc, 0, v0")
    e("s_and_saveexec_b64 s[24:25], vcc")
    e(f"s_cbranch_execz {lbl}")
    e("s_mul_i32 s24, s2, 160")
    e(f"s_add_u32 s24, s24, {WS_ST+8*stbase[0]}")
    e("v_mov_b32 v1, s24")
    e("s_waitcnt lgkmcnt(0)")
    for i in range(n):
        e(f"v_mov_b32 v2, s{64+2*i}")
        e(f"v_mov_b32 v3, s{65+2*i}")
        e(f"buffer_store_dwordx2 v[2:3], v1, s[20:23], 0 offen offset:{8*i}")
        e("s_nop 1")
    stbase[0] += n; nstamp[0] = 0

def srd(dst, base_pair, nbytes):
    e(f"s_mov_b32 s{dst}, s{base_pair}")
    e(f"s_mov_b32 s{dst+1}, s{base_pair+1}")
    e(f"s_mov_b32 s{dst+2}, {nbytes}")
    e(f"s_mov_b32 s{dst+3}, 0x00020000")

def wave_sum(v, sdst):
    for sh in (1, 2, 4, 8):
        e("s_nop 1")
        e(f"v_add_f32_dpp v{v}, v{v}, v{v} row_shr:{sh} row_mask:0xf bank_mask:0xf bound_ctrl:0")
    e("s_nop 1")
    e(f"v_add_f32_dpp v{v}, v{v}, v{v} row_bcast:15 row_mask:0xa bank_mask:0xf")
    e("s_nop 1")
    e(f"v_add_f32_dpp v{v}, v{v}, v{v} row_bcast:31 row_mask:0xc bank_mask:0xf")
    e("s_nop 1")
    e(f"v_readlane_b32 s{sdst}, v{v}, 63")

def bf16r(dst, src):
    e(f"v_cvt_pk_bf16_f32 v{dst}, v{src}, v{src}")
    e(f"v_lshlrev_b32 v{dst}, 16, v{dst}")

def unpack(dlo, src):
    e(f"v_lshlrev_b32 v{dlo}, 16, v{src}")
    e(f"v_and_b32 v{dlo+1}, 0xffff0000, v{src}")

def layernorm8(xr, t0, s0):
    e(f"v_add_f32 v{t0}, v{xr}, v{xr+1}")
    for i in range(2, 8):
        e(f"v_add_f32 v{t0}, v{t0}, v{xr+i}")
    wave_sum(t0, s0)
    e("s_nop 1")
    e(f"v_mov_b32 v{t0}, s{s0}")
    e(f"v_mul_f32 v{t0}, 0x3b000000, v{t0}")
    e(f"v_sub_f32 v{t0+1}, v{xr}, v{t0}")
    e(f"v_mul_f32 v{t0+2}, v{t0+1}, v{t0+1}")
    for i in range(1, 8):
        e(f"v_sub_f32 v{t0+1}, v{xr+i}, v{t0}")
        e(f"v_fmac_f32 v{t0+2}, v{t0+1}, v{t0+1}")
    wave_sum(t0+2, s0+1)
    e("s_nop 1")
    e(f"v_mov_b32 v{t0+2}, s{s0+1}")
    e(f"v_mul_f32 v{t0+2}, 0x3b000000, v{t0+2}")
    bf16r(t0+2, t0+2)
    e(f"v_add_f32 v{t0+2}, 0x3727c5ac, v{t0+2}")
    bf16r(t0+2, t0+2)
    e(f"v_sqrt_f32 v{t0+2}, v{t0+2}")
    e("s_nop 0")
    bf16r(t0+2, t0+2)
    e(f"v_rcp_f32 v{t0+2}, v{t0+2}")
    bf16r(t0, t0)
    for i in range(8):
        e(f"v_sub_f32 v{xr+i}, v{xr+i}, v{t0}")
        bf16r(xr+i, xr+i)
        e(f"v_mul_f32 v{xr+i}, v{xr+i}, v{t0+2}")
        bf16r(xr+i, xr+i)

def rs32(regs):
    n = len(regs)//2
    e("s_nop 1")
    for i in range(n):
        e(f"v_permlane32_swap_b32 v{regs[i]}, v{regs[i+n]}")
    e("s_nop 1")
    for i in range(n):
        e(f"v_add_f32 v{regs[i]}, v{regs[i]}, v{regs[i+n]}")
    return regs[:n]
def rs16(regs):
    n = len(regs)//2
    e("s_nop 1")
    for i in range(n):
        e(f"v_permlane16_swap_b32 v{regs[i]}, v{regs[i+n]}")
    e("s_nop 1")
    for i in range(n):
        e(f"v_add_f32 v{regs[i]}, v{regs[i]}, v{regs[i+n]}")
    return regs[:n]

def flag_store(val):
    e(f"v_mov_b32 v4, {val}")
    e("v_mov_b32 v5, s30")
    e("global_store_byte v5, v4, s[40:41] sc1")

def poll(k, nlanes_dw, base_s, lbl):
    e(f"v_lshlrev_b32 v6, 2, v1")
    e(f"v_add_u32 v6, s{base_s}, v6")
    e("s_mov_b32 s63, 0x40000")
    if nlanes_dw < 64:
        e("s_mov_b64 exec, s[42:43]")
    for _ in range(PRE):
        e("s_sleep 8")
    e(f"{lbl}:")
    if SLP: e(f"s_sleep {SLP}")
    e("global_load_dword v7, v6, s[40:41] sc1")
    e("s_sub_u32 s63, s63, 1")
    e("s_cmp_eq_u32 s63, 0")
    e(f"s_cbranch_scc1 {lbl}_X")
    e("s_waitcnt vmcnt(0)")
    e("v_or_b32 v7, 0x80808080, v7")
    e(f"v_subrev_u32 v7, {k*0x01010101}, v7")
    e("v_and_b32 v7, 0x80808080, v7")
    e("v_cmp_ne_u32 vcc, 0x80808080, v7")
    e("s_nop 1")
    e(f"s_cbranch_vccnz {lbl}")
    e(f"{lbl}_X:")
    e("s_waitcnt vmcnt(0)")
    e("s_mov_b64 exec, -1")


e(".globl k2_kernel")
e(".p2align 8")
e(".type k2_kernel,@function")
e("k2_kernel:")
stamp()
e("s_cmp_ge_u32 s2, 256")
e("s_cbranch_scc1 K12_END")
e(f"s_load_dwordx4 s[44:47], s[0:1], {KA_K}     ; k,v")
e(f"s_load_dwordx2 s[60:61], s[0:1], {KA_WS}")
e("v_and_b32 v1, 63, v0           ; lane")
e("v_lshrrev_b32 v2, 6, v0        ; wave")
e("s_and_b32 s28, s2, 7           ; g")
e("s_lshr_b32 s29, s2, 3          ; j")
e("s_lshl_b32 s30, s28, 5")
e("s_add_u32 s30, s30, s29")
e("v_readfirstlane_b32 s31, v2")
e("v_and_b32 v6, 15, v1           ; l&15")
e("v_lshrrev_b32 v7, 4, v1        ; l>>4")
e("v_lshlrev_b32 v81, 11, v2")
e("s_lshl_b32 s24, s28, 24")
e("s_lshl_b32 s25, s29, 15")
e("s_add_u32 s24, s24, s25")
e(f"s_add_u32 s24, s24, {61440*256}")
e("v_and_b32 v3, 3, v1")
e("v_lshlrev_b32 v4, 8, v3")
e("v_lshl_add_u32 v4, v7, 4, v4")
e("s_lshl_b32 s25, s28, 10")
e("v_add_u32 v4, s25, v4          ; q addr")
e("v_lshl_add_u32 v5, v2, 4, v6")
e("v_lshlrev_b32 v5, 8, v5")
e("v_lshl_add_u32 v5, v7, 4, v5   ; K addr")
e("s_waitcnt lgkmcnt(0)")
srd(20, 60, WS_BYTES)
e("s_add_u32 s12, s44, s24")
e("s_addc_u32 s13, s45, 0")
e("s_mov_b32 s14, 32768")
e("s_mov_b32 s15, 0x00020000")
e("s_add_u32 s16, s46, s24")
e("s_addc_u32 s17, s47, 0")
e("s_mov_b32 s18, 32768")
e("s_mov_b32 s19, 0x00020000")
for jj in range(4):
    e(f"buffer_load_dwordx4 v[{8+4*jj}:{11+4*jj}], v4, s[20:23], 0 offen offset:{WS_Q+64*jj}")
for jj in range(4):
    e(f"buffer_load_dwordx4 v[{32+4*jj}:{35+4*jj}], v5, s[12:15], 0 offen offset:{64*jj}" + NT)
e("v_lshlrev_b32 v5, 4, v2")
e("v_lshl_add_u32 v5, v7, 2, v5")
e("v_lshlrev_b32 v5, 8, v5")
e("v_lshl_add_u32 v5, v6, 4, v5")
for r in range(4):
    e(f"buffer_load_dwordx4 v[{48+4*r}:{51+4*r}], v5, s[16:19], 0 offen offset:{256*r}" + NT)
stamp()
e("s_waitcnt vmcnt(4)")
stamp()
for jj in range(4):
    c = "0" if jj == 0 else "v[24:27]"
    e(f"v_mfma_f32_16x16x32_bf16 v[24:27], v[{32+4*jj}:{35+4*jj}], v[{8+4*jj}:{11+4*jj}], {c}")
e("v_mov_b32 v28, 0x3db504f3")
e("s_nop 7")
for i in range(4):
    bf16r(24+i, 24+i)
    e(f"v_mul_f32 v{24+i}, v{24+i}, v28")
    bf16r(24+i, 24+i)
e("v_max_f32 v30, v24, v25")
e("v_max3_f32 v30, v30, v26, v27")
e("v_mov_b32 v31, v30")
e("s_nop 1")
e("v_permlane16_swap_b32 v30, v31")
e("s_nop 1")
e("v_max_f32 v30, v30, v31")
e("v_mov_b32 v31, v30")
e("s_nop 1")
e("v_permlane32_swap_b32 v30, v31")
e("s_nop 1")
e("v_max_f32 v30, v30, v31")
for i in range(4):
    e(f"v_sub_f32 v{24+i}, v{24+i}, v30")
    e(f"v_mul_f32 v{24+i}, 0x3fb8aa3b, v{24+i}")
    e(f"v_exp_f32 v{24+i}, v{24+i}")
e("s_nop 0")
e("v_add_f32 v31, v24, v25")
e("v_add_f32 v28, v26, v27")
e("v_add_f32 v31, v31, v28")
e("v_mov_b32 v28, v31")
e("s_nop 1")
e("v_permlane16_swap_b32 v31, v28")
e("s_nop 1")
e("v_add_f32 v31, v31, v28")
e("v_mov_b32 v28, v31")
e("s_nop 1")
e("v_permlane32_swap_b32 v31, v28")
e("s_nop 1")
e("v_add_f32 v31, v31, v28         ; l_w")
e("v_lshlrev_b32 v5, 5, v2")
e("v_lshl_add_u32 v5, v3, 3, v5")
e(f"ds_write_b64 v5, v[30:31] offset:{LD_ML}")
for k in range(32):
    e(f"v_mov_b32 v{84+k}, 0")
for r in range(4):
    e(f"s_waitcnt vmcnt({3-r})")
    for k in range(4):
        unpack(8+2*k, 48+4*r+k)
    for h in range(4):
        e(f"v_mov_b32_dpp v{16+2*h}, v{24+r} quad_perm:[{h},{h},{h},{h}] row_mask:0xf bank_mask:0xf")
    for h in range(4):
        for k in range(4):
            a = 84+8*h+2*k
            e(f"v_pk_fma_f32 v[{a}:{a+1}], v[{8+2*k}:{9+2*k}], v[{16+2*h}:{17+2*h}], v[{a}:{a+1}] op_sel_hi:[1,0,1]")
stamp()
ra = rs32(list(range(84, 116)))
rb = rs16(ra)
e("v_lshl_add_u32 v5, v1, 5, v81")
e(f"ds_write_b128 v5, v[84:87] offset:{LD_O}")
e(f"ds_write_b128 v5, v[88:91] offset:{LD_O+16}")
e("s_waitcnt lgkmcnt(0)")
e("s_barrier                      ; B3")
e("v_lshrrev_b32 v3, 7, v0")
e("v_lshlrev_b32 v5, 3, v3")
for w in range(8):
    e(f"ds_read_b64 v[{8+2*w}:{9+2*w}], v5 offset:{LD_ML+32*w}")
e("v_lshlrev_b32 v5, 2, v0")
for w in range(8):
    e(f"ds_read_b32 v{24+w}, v5 offset:{LD_O+2048*w}")
e("s_waitcnt lgkmcnt(8)")
e("v_max3_f32 v32, v8, v10, v12")
e("v_max3_f32 v33, v14, v16, v18")
e("v_max3_f32 v32, v32, v20, v22")
e("v_max_f32 v32, v32, v33         ; M")
for w in range(8):
    e(f"v_sub_f32 v{8+2*w}, v{8+2*w}, v32")
    e(f"v_mul_f32 v{8+2*w}, 0x3fb8aa3b, v{8+2*w}")
    e(f"v_exp_f32 v{8+2*w}, v{8+2*w}")
e("s_waitcnt lgkmcnt(0)")
e("v_mul_f32 v34, v8, v24")
e("v_mul_f32 v33, v8, v9")
for w in range(1, 8):
    e(f"v_fmac_f32 v34, v{8+2*w}, v{24+w}")
    e(f"v_fmac_f32 v33, v{8+2*w}, v{9+2*w}")
e("s_lshl_b32 s24, s30, 11")
e(f"s_add_u32 s24, s24, {WS_OP}")
e("v_add_u32 v5, s24, v5")
e("buffer_store_dword v34, v5, s[20:23], 0 offen")
e("v_and_b32 v4, 127, v0")
e("v_cmp_eq_u32 vcc, 0, v4")
e("s_and_saveexec_b64 s[24:25], vcc")
e("s_lshl_b32 s26, s30, 5")
e(f"s_add_u32 s26, s26, {WS_ML}")
e("v_lshlrev_b32 v5, 3, v3")
e("v_add_u32 v5, s26, v5")
e("buffer_store_dwordx2 v[32:33], v5, s[20:23], 0 offen")
e("s_mov_b64 exec, s[24:25]")
stamp()
stamp_out("K12_END")
e("s_endpgm")
e("K12_END:")
e("s_endpgm")
e(".globl k4_kernel")
e(".p2align 8")
e(".type k4_kernel,@function")
e("k4_kernel:")
stamp()
e("s_cmp_ge_u32 s2, 224")
e("s_cbranch_scc1 K4_END")
e(f"s_load_dwordx2 s[60:61], s[0:1], {KA_WS}")
e(f"s_load_dwordx2 s[44:45], s[0:1], {KA_X}")
e(f"s_load_dwordx4 s[56:59], s[0:1], {KA_W1}   ; w1,b1")
e(f"s_load_dwordx2 s[32:33], s[0:1], {KA_W2}")
e("v_and_b32 v1, 63, v0           ; lane")
e("v_lshrrev_b32 v2, 6, v0        ; wave")
e("v_and_b32 v6, 15, v1           ; l&15")
e("v_lshrrev_b32 v7, 4, v1        ; l>>4")
e("v_lshlrev_b32 v81, 11, v2")
e("v_readfirstlane_b32 s31, v2")
e("s_and_b32 s24, s2, 7")
e("s_mul_i32 s24, s24, 7")
e("s_lshr_b32 s25, s2, 5")
e("s_add_u32 s24, s24, s25")
e("s_lshl_b32 s24, s24, 5")
e("s_lshr_b32 s25, s2, 3")
e("s_and_b32 s25, s25, 3")
e("s_lshl_b32 s25, s25, 3")
e("s_add_u32 s62, s24, s25        ; f0")
e("v_and_b32 v3, 127, v0")
e("v_lshrrev_b32 v4, 7, v0        ; part")
e("v_lshlrev_b32 v5, 14, v4")
e("v_lshl_add_u32 v5, v3, 4, v5")
e(f"v_add_u32 v5, {WS_AP}, v5")
e("s_waitcnt lgkmcnt(0)")
srd(20, 60, WS_BYTES)
for i in range(8):
    e(f"buffer_load_dwordx4 v[{8+4*i}:{11+4*i}], v5, s[20:23], 0 offen offset:{(i&1)*2048}")
    if i & 1 and i < 7:
        e("v_add_u32 v5, 0x1000, v5")
srd(4, 44, 1024)
e("v_lshlrev_b32 v5, 4, v1")
e("buffer_load_dwordx4 v[40:43], v5, s[4:7], 0 offen   ; x cols 8l..8l+7")
srd(8, 56, 512*1792*2)
e("s_lshl_b32 s24, s62, 1")
e("s_movk_i32 s25, 3584")
e("v_mul_lo_u32 v5, v0, s25")
e("v_add_u32 v5, s24, v5")
e("buffer_load_dwordx4 v[72:75], v5, s[8:11], 0 offen")
srd(16, 58, 1792*2)
e("v_and_b32 v5, 7, v0")
e("v_lshlrev_b32 v5, 1, v5")
e("v_add_u32 v5, s24, v5")
e("buffer_load_ushort v80, v5, s[16:19], 0 offen")
srd(12, 32, 1792*512*2)
e("s_lshl_b32 s25, s62, 10")
e("v_lshlrev_b32 v5, 10, v2")
e("v_lshl_add_u32 v5, v1, 4, v5")
e("v_add_u32 v5, s25, v5")
e("buffer_load_dwordx4 v[76:79], v5, s[12:15], 0 offen")
stamp()
e("s_waitcnt vmcnt(4)")
stamp()
for i in range(1, 8):
    for k in range(4):
        e(f"v_add_f32 v{8+k}, v{8+k}, v{8+4*i+k}")
e("v_lshlrev_b32 v5, 4, v0")
e(f"ds_write_b128 v5, v[8:11] offset:{LD_O}")
e("s_waitcnt lgkmcnt(0)")
e("s_barrier                      ; B10")
e("v_lshlrev_b32 v5, 5, v1")
for p in range(4):
    e(f"ds_read_b128 v[{8+8*p}:{11+8*p}], v5 offset:{LD_O+2048*p}")
    e(f"ds_read_b128 v[{12+8*p}:{15+8*p}], v5 offset:{LD_O+2048*p+16}")
e("s_waitcnt lgkmcnt(0) vmcnt(3)")
for k in range(4):
    unpack(44+2*k, 40+k)
for k in range(8):
    e(f"v_add_f32 v{8+k}, v{8+k}, v{16+k}")
    e(f"v_add_f32 v{24+k}, v{24+k}, v{32+k}")
    e(f"v_add_f32 v{8+k}, v{8+k}, v{24+k}")
    bf16r(8+k, 8+k)
    e(f"v_add_f32 v{8+k}, v{8+k}, v{44+k}")
    bf16r(8+k, 8+k)
    e(f"v_mov_b32 v{84+k}, v{8+k}     ; keep h")
e("s_or_b32 s24, s2, s31")
e("s_cmp_lg_u32 s24, 0")
e("s_cbranch_scc1 K4_NOH")
e("v_lshlrev_b32 v5, 5, v1")
e(f"v_add_u32 v5, {WS_H}, v5")
e("buffer_store_dwordx4 v[84:87], v5, s[20:23], 0 offen")
e("buffer_store_dwordx4 v[88:91], v5, s[20:23], 0 offen offset:16")
e("K4_NOH:")
layernorm8(8, 16, 24)
e("v_lshl_add_u32 v5, v1, 5, v81")
e("ds_write_b128 v5, v[8:11]")
e("ds_write_b128 v5, v[12:15] offset:16")
e("v_lshl_add_u32 v5, v0, 2, v81   ; ln2[t] (t = w*64+l)")
e("s_waitcnt lgkmcnt(0)")
e("ds_read_b32 v16, v5")
e("s_waitcnt vmcnt(0)")
for k in range(4):
    unpack(20+2*k, 72+k)
e("s_waitcnt lgkmcnt(0)")
for k in range(8):
    e(f"v_mul_f32 v{20+k}, v16, v{20+k}")
q4 = rs32(list(range(20, 28)))
q2 = rs16(q4)
for sh in (1, 2, 4, 8):
    e("s_nop 1")
    for r in q2:
        e(f"v_add_f32_dpp v{r}, v{r}, v{r} row_shr:{sh} row_mask:0xf bank_mask:0xf bound_ctrl:0")
e("v_lshrrev_b32 v4, 5, v1")
e("v_lshlrev_b32 v5, 4, v4")
e("v_and_b32 v4, 1, v7")
e("v_lshl_add_u32 v5, v4, 3, v5")
e("v_lshl_add_u32 v5, v2, 5, v5")
e("v_cmp_eq_u32 vcc, 15, v6")
e("s_and_saveexec_b64 s[24:25], vcc")
e(f"ds_write_b64 v5, v[{q2[0]}:{q2[1]}] offset:{LD_MISC}")
e("s_mov_b64 exec, s[24:25]")
e("s_waitcnt lgkmcnt(0)")
e("s_barrier                      ; B11")
e("v_and_b32 v4, 7, v0")
e("v_lshlrev_b32 v5, 2, v4")
for w in range(8):
    e(f"ds_read_b32 v{8+w}, v5 offset:{LD_MISC+32*w}")
e("s_waitcnt lgkmcnt(0)")
e("v_add_f32 v8, v8, v9")
e("v_add_f32 v10, v10, v11")
e("v_add_f32 v12, v12, v13")
e("v_add_f32 v14, v14, v15")
e("v_add_f32 v8, v8, v10")
e("v_add_f32 v12, v12, v14")
e("v_add_f32 v8, v8, v12")
bf16r(8, 8)
e("v_lshlrev_b32 v80, 16, v80")
e("v_add_f32 v8, v8, v80")
bf16r(8, 8)
e("v_mul_f32 v9, v8, v8")
e("v_mul_f32 v9, v9, v8")
e("v_mov_b32 v10, 0x3d372713")
e("v_fma_f32 v9, v9, v10, v8")
e("v_mul_f32 v9, 0x3f4c422a, v9")
e("v_mul_f32 v9, 0x4038aa3b, v9")
e("v_exp_f32 v9, v9")
e("s_nop 0")
e("v_add_f32 v9, 1.0, v9")
e("v_rcp_f32 v9, v9")
e("s_nop 0")
e("v_fma_f32 v9, v9, -2.0, 2.0")
e("v_mul_f32 v9, v9, v8")
e("v_mul_f32 v9, 0.5, v9")
bf16r(9, 9)
e("s_nop 0")
e("v_readlane_b32 s24, v9, s31     ; g[w]")
for k in range(4):
    unpack(16+2*k, 76+k)
e("s_nop 1")
for k in range(8):
    e(f"v_mul_f32 v{16+k}, s24, v{16+k}")
e("v_lshl_add_u32 v5, v1, 5, v81")
e(f"ds_write_b128 v5, v[16:19] offset:{LD_O}")
e(f"ds_write_b128 v5, v[20:23] offset:{LD_O+16}")
e("s_waitcnt lgkmcnt(0)")
e("s_barrier                      ; B12")
e("v_lshlrev_b32 v5, 2, v0")
for w in range(8):
    e(f"ds_read_b32 v{8+w}, v5 offset:{LD_O+2048*w}")
e("s_waitcnt lgkmcnt(0)")
e("v_add_f32 v8, v8, v9")
e("v_add_f32 v10, v10, v11")
e("v_add_f32 v12, v12, v13")
e("v_add_f32 v14, v14, v15")
e("v_add_f32 v8, v8, v10")
e("v_add_f32 v12, v12, v14")
e("v_add_f32 v8, v8, v12")
e("s_lshl_b32 s24, s2, 11")
e(f"s_add_u32 s24, s24, {WS_MP}")
e("v_add_u32 v5, s24, v5")
e("buffer_store_dword v8, v5, s[20:23], 0 offen")
stamp()
stamp_out("K4_END")
e("K4_END:")
e("s_endpgm")

src = open("v1_working.s").read().split("\n")
def grab(name):
    out=[]; on=False
    for l in src:
        if l.startswith(f".globl {name}"): on=True
        elif on and (l.startswith(".globl") or l.startswith(".section")): break
        if on: out.append(l)
    return out
L += grab("k1_qproj_kernel")
L += grab("k3_wo_kernel")
L += grab("k5_fin_kernel")
for _l in L:
    _m = re.search(r"buffer_\w+.*offset:(\d+)", _l)
    assert not _m or int(_m.group(1)) < 4096, _l
kernels = [("k1_qproj_kernel",256,256,9216,96),("k2_kernel",256,512,LD_TOTAL,120),("k3_wo_kernel",256,256,8192,96),("k4_kernel",224,512,LD_TOTAL,96),("k5_fin_kernel",32,256,1024,64)]
hdr = [f"; @launch kernel={n} grid=({g},1,1) block=({b},1,1) lds={l}" for (n,g,b,l,v) in kernels]
hdr += ['.amdgcn_target "amdgcn-amd-amdhsa--gfx950"', ".text"]
tail = ['.section .rodata,"a"']
for (n,g,b,l,v) in kernels:
    tail += [".p2align 6", f".amdhsa_kernel {n}",
        f"  .amdhsa_next_free_vgpr {v}", "  .amdhsa_next_free_sgpr 100",
        f"  .amdhsa_accum_offset {v}", "  .amdhsa_group_segment_fixed_size 0",
        "  .amdhsa_kernarg_size 104", "  .amdhsa_user_sgpr_count 2",
        "  .amdhsa_user_sgpr_kernarg_segment_ptr 1", "  .amdhsa_system_sgpr_workgroup_id_x 1",
        "  .amdhsa_float_denorm_mode_32 3", ".end_amdhsa_kernel"]
open(OUT, "w").write("\n".join(hdr + L + tail) + "\n")
print("wrote", OUT, len(L), "lines; stamps", stbase[0])
```
